```python
import torch

def _softmax(x, axis=-1):
    return torch.softmax(x, dim=axis)

def _gelu(x):
    return torch.nn.functional.gelu(x, approximate='tanh')

def _silu(x):
    return torch.nn.functional.silu(x)

def _sigmoid(x):
    return torch.sigmoid(x)

def _layernorm(x, axis=-1, eps=1e-05):
    m = x.mean(dim=axis, keepdim=True)
    v = x.var(dim=axis, keepdim=True, unbiased=False)
    return (x - m) / torch.sqrt(v + eps)

def _scatter_add(tgt, idx, src, axis=0):
    return tgt.clone().index_add_(axis, idx, src)

def _segment_sum(src, seg, n):
    out = torch.zeros((n,) + src.shape[1:], dtype=src.dtype)
    return out.index_add_(0, seg, src)

def _pad(x, pw):
    flat = tuple((v for pair in reversed(pw) for v in pair))
    return torch.nn.functional.pad(x, flat)
kernel_name = 'standalone__tensor_product_equiv_mace__graph'

def setup_inputs():

    _w = lambda a: (lambda t: t.to(torch.bfloat16) if t.is_floating_point() else t)(torch.as_tensor(a))
    N, deg = (10000, 32)
    Lmax, C, De = (1, 128, 16)
    M = (Lmax + 1) ** 2
    E = N * deg
    src = (lambda lo, hi, *s: torch.randint(lo, hi, s))(0, N, E).to(torch.int64)
    dst = (lambda lo, hi, *s: torch.randint(lo, hi, s))(0, N, E).to(torch.int64)
    r = (lambda *s: torch.randn(*s, dtype=torch.bfloat16) * 0.05)(E, 3).to(float)
    r = r / (torch.linalg.norm(r, dim=-1, keepdim=True).to(float) + 1e-06)
    rx, ry, rz = (r[:, 0].clone(), r[:, 1].clone(), r[:, 2].clone())
    x2, y2, z2 = (rx * rx, ry * ry, rz * rz)
    sh_list = [torch.ones_like(rx), rx, ry, rz, rx * ry, ry * rz, 2.0 * z2 - x2 - y2, rx * rz, x2 - y2, ry * (3.0 * x2 - y2), rx * ry * rz, ry * (4.0 * z2 - x2 - y2), rz * (2.0 * z2 - 3.0 * x2 - 3.0 * y2), rx * (4.0 * z2 - x2 - y2), rz * (x2 - y2), rx * (x2 - 3.0 * y2)]
    sh16 = torch.stack(sh_list, dim=-1).to(float)
    pad = max(0, M - 16)
    sh_full = torch.cat([sh16, torch.zeros((E, pad), dtype=float)], dim=-1)[:, :M]
    cg = ((lambda *s: torch.randn(*s, dtype=torch.bfloat16) * 0.05)(M, M, M) * (1.0 / float(M))).to(float)
    return {'x': _w(((lambda *s: torch.randn(*s, dtype=torch.bfloat16) * 0.05)(N, M, C) * 0.3).to(float)), 'src': _w(src), 'dst': _w(dst), 'sh': _w(sh_full.to(float)), 'edge_attr': _w(((lambda *s: torch.randn(*s, dtype=torch.bfloat16) * 0.05)(E, De) * 0.3).to(float)), 'cg': _w(cg), 'w_r': _w(((lambda *s: torch.randn(*s, dtype=torch.bfloat16) * 0.05)(De, C) * (1.0 / float(De) ** 0.5)).to(float)), 'w_out': _w(((lambda *s: torch.randn(*s, dtype=torch.bfloat16) * 0.05)(C, C) * (1.0 / float(C) ** 0.5)).to(float))}

def reference(x, src, dst, sh, edge_attr, cg, w_r, w_out):
    N = x.shape[0]
    M = x.shape[1]
    C = x.shape[2]
    h = x[src]
    tp = torch.einsum('uvw,euc,ev->ewc', cg, h, sh)
    rw = edge_attr @ w_r
    msg = tp * rw[:, None, :]
    msg2 = msg.reshape(-1, M * C)
    agg = _segment_sum(msg2, dst, N).reshape(N, M, C)
    out = torch.einsum('nmc,cd->nmd', agg, w_out)
    return out
```

```python
import sys

N=10000; E=320000; NB=250; NPB=40; CH=1280; NW=10
RECB=48
XT_OFF=0; XT_SZ=N*1024
REC_OFF=0xA00000; REC_SZ=E*RECB
TBL_OFF=0x1900000; TBL_SZ=256*1024
WOF_OFF=0x1A00000; WOF_SZ=32768
WS_USED=WOF_OFF+WOF_SZ

class Asm:
    def __init__(self): self.l=[]
    def __call__(self,s):
        for line in s.strip('\n').split('\n'):
            self.l.append('    '+line.strip() if not line.strip().endswith(':') else line.strip())
    def raw(self,s): self.l.append(s)
    def text(self): return '\n'.join(self.l)+'\n'

def srd(a,r,lo,hi,size,off=0):
    if off:
        a(f"""s_add_u32 s{r}, s{lo}, {hex(off)}
              s_addc_u32 s{r+1}, s{hi}, 0""")
    else:
        a(f"""s_mov_b32 s{r}, s{lo}
              s_mov_b32 s{r+1}, s{hi}""")
    a(f"""s_mov_b32 s{r+2}, {hex(size)}
          s_mov_b32 s{r+3}, 0x00020000""")

def scan_incl(a,v):
    a(f"""s_nop 1
          v_add_u32_dpp v{v}, v{v}, v{v} row_shr:1 row_mask:0xf bank_mask:0xf bound_ctrl:0
          s_nop 1
          v_add_u32_dpp v{v}, v{v}, v{v} row_shr:2 row_mask:0xf bank_mask:0xf bound_ctrl:0
          s_nop 1
          v_add_u32_dpp v{v}, v{v}, v{v} row_shr:4 row_mask:0xf bank_mask:0xf bound_ctrl:0
          s_nop 1
          v_add_u32_dpp v{v}, v{v}, v{v} row_shr:8 row_mask:0xf bank_mask:0xf bound_ctrl:0
          s_nop 1
          v_add_u32_dpp v{v}, v{v}, v{v} row_bcast:15 row_mask:0xa bank_mask:0xf
          s_nop 1
          v_add_u32_dpp v{v}, v{v}, v{v} row_bcast:31 row_mask:0xc bank_mask:0xf""")

K1_LDS=7168
def gen_k1(a, opt):
    ST_EA=opt.get('k1_rec_flags','')
    ST_X=opt.get('k1_x_flags','')
    BINS=0; STARTS=1024; BR=2048
    sDST,sSRC,sSH,sEA,sX,sWS,sWO=24,28,32,36,40,44,48
    a.raw(".p2align 8")
    a.raw(".type mace_prep_kernel,@function")
    a.raw("mace_prep_kernel:")
    a(f"""s_cmp_ge_u32 s2, {NB}
          s_cbranch_scc1 K1_END
          s_load_dwordx16 s[4:19], s[0:1], 0
          s_load_dwordx2 s[20:21], s[0:1], 80
          v_lshlrev_b32 v1, 2, v0
          v_lshlrev_b32 v2, 3, v0
          v_lshlrev_b32 v3, 4, v0
          v_lshrrev_b32 v10, 6, v0
          v_and_b32 v4, 63, v0
          v_lshlrev_b32 v4, 2, v4
          v_readfirstlane_b32 s22, v10
          v_mov_b32 v5, 1
          v_mov_b32 v11, 0
          v_cmp_gt_u32 vcc, 0x100, v0
          s_and_saveexec_b64 s[54:55], vcc
          ds_write_b32 v1, v11
          s_mov_b64 exec, s[54:55]
          s_mul_i32 s23, s2, {CH}
          s_lshl_b32 s52, s23, 2
          s_lshl_b32 s53, s23, 3
          s_add_u32 s54, s53, {640*8}
          s_lshl_b32 s55, s23, 5
          s_add_u32 s56, s55, {640*16}
          s_add_u32 s57, s55, {2*640*16}
          s_add_u32 s58, s55, {3*640*16}
          s_mul_i32 s59, s2, {NPB}
          s_lshl_b32 s60, s22, 2
          s_add_u32 s59, s59, s60
          s_lshl_b32 s59, s59, 10
          s_waitcnt lgkmcnt(0)""")
    srd(a,sDST,8,9,E*4); srd(a,sSRC,6,7,E*4); srd(a,sSH,10,11,E*8); srd(a,sEA,12,13,E*32)
    srd(a,sX,4,5,N*1024); srd(a,sWS,20,21,WS_USED); srd(a,sWO,18,19,128*128*2)
    a(f"""s_cmp_ge_u32 s2, 32
          s_cbranch_scc1 K1_NOWOF
          s_cmp_ge_u32 s22, 4
          s_cbranch_scc1 K1_NOWOF
          v_lshrrev_b32 v70, 6, v0
          v_lshlrev_b32 v70, 11, v70
          v_and_b32 v71, 3, v0
          v_lshl_or_b32 v70, v71, 9, v70
          v_bfe_u32 v71, v0, 4, 2
          v_lshl_or_b32 v70, v71, 4, v70
          v_bfe_u32 v71, v0, 2, 2
          v_lshl_or_b32 v70, v71, 1, v70
          s_and_b32 s60, s2, 3
          s_lshl_b32 s60, s60, 13
          s_lshr_b32 s61, s2, 3
          s_lshl_b32 s61, s61, 6
          s_add_u32 s60, s60, s61
          s_bfe_u32 s61, s2, 0x10002
          s_lshl_b32 s61, s61, 3
          s_add_u32 s60, s60, s61
          buffer_load_ushort v68, v70, s[{sWO}:{sWO+3}], s60 offen
          buffer_load_ushort v69, v70, s[{sWO}:{sWO+3}], s60 offen offset:256""")
    a.raw("K1_NOWOF:")
    a(f"""buffer_load_dword v6, v1, s[{sDST}:{sDST+3}], s52 offen
          buffer_load_dword v7, v1, s[{sDST}:{sDST+3}], s52 offen offset:2560
          buffer_load_dword v8, v1, s[{sSRC}:{sSRC+3}], s52 offen
          buffer_load_dword v9, v1, s[{sSRC}:{sSRC+3}], s52 offen offset:2560
          buffer_load_dwordx2 v[12:13], v2, s[{sSH}:{sSH+3}], s53 offen
          buffer_load_dwordx2 v[16:17], v2, s[{sSH}:{sSH+3}], s54 offen
          buffer_load_dwordx4 v[20:23], v3, s[{sEA}:{sEA+3}], s55 offen
          buffer_load_dwordx4 v[24:27], v3, s[{sEA}:{sEA+3}], s56 offen
          buffer_load_dwordx4 v[28:31], v3, s[{sEA}:{sEA+3}], s57 offen
          buffer_load_dwordx4 v[32:35], v3, s[{sEA}:{sEA+3}], s58 offen""")
    for k in range(4):
        for u in range(4):
            a(f"buffer_load_dword v{36+4*k+u}, v4, s[{sX}:{sX+3}], s59 offen offset:{k*1024+u*256}")
    a(f"""s_barrier
          s_waitcnt vmcnt(24)
          v_mul_u32_u24 v72, 0xcccd, v6
          v_mul_u32_u24 v73, 0xcccd, v7
          v_lshrrev_b32 v72, 21, v72
          v_lshrrev_b32 v73, 21, v73
          v_lshlrev_b32 v74, 2, v72
          v_lshlrev_b32 v75, 2, v73
          ds_add_rtn_u32 v76, v74, v5
          ds_add_rtn_u32 v77, v75, v5
          v_mul_u32_u24 v78, 40, v72
          v_mul_u32_u24 v79, 40, v73
          v_sub_u32 v78, v6, v78
          v_sub_u32 v79, v7, v79
          s_waitcnt vmcnt(22)
          v_lshl_or_b32 v14, v8, 10, v78
          v_lshl_or_b32 v18, v9, 10, v79
          v_mov_b32 v15, 0
          v_mov_b32 v19, 0
          s_waitcnt lgkmcnt(0)
          v_lshl_or_b32 v80, v76, 8, v72
          v_lshl_or_b32 v81, v77, 8, v73
          ds_write_b32 v1, v80 offset:{BR}
          ds_write_b32 v1, v81 offset:{BR+2560}
          s_waitcnt lgkmcnt(0)
          s_barrier
          s_cmp_lg_u32 s22, 0
          s_cbranch_scc1 K1_NOSCAN
          v_lshlrev_b32 v82, 2, v4
          ds_read_b128 v[84:87], v82 offset:{BINS}
          s_waitcnt lgkmcnt(0)
          v_add_u32 v88, v84, v85
          v_add_u32 v89, v88, v86
          v_add_u32 v90, v89, v87
          v_mov_b32 v91, v90""")
    scan_incl(a,91)
    a(f"""v_sub_u32 v92, v91, v90
          v_add_u32 v93, v92, v84
          v_add_u32 v94, v92, v88
          v_add_u32 v95, v92, v89
          ds_write_b128 v82, v[92:95] offset:{STARTS}
          v_add_u32 v96, s23, v92
          v_add_u32 v97, s23, v93
          v_add_u32 v98, s23, v94
          v_add_u32 v99, s23, v95
          v_lshl_or_b32 v96, v84, 19, v96
          v_lshl_or_b32 v97, v85, 19, v97
          v_lshl_or_b32 v98, v86, 19, v98
          v_lshl_or_b32 v99, v87, 19, v99
          v_lshlrev_b32 v83, 10, v4
          s_lshl_b32 s60, s2, 2
          s_add_u32 s60, s60, {hex(TBL_OFF)}
          buffer_store_dword v96, v83, s[{sWS}:{sWS+3}], s60 offen
          buffer_store_dword v97, v83, s[{sWS}:{sWS+3}], s60 offen offset:1024
          buffer_store_dword v98, v83, s[{sWS}:{sWS+3}], s60 offen offset:2048
          buffer_store_dword v99, v83, s[{sWS}:{sWS+3}], s60 offen offset:3072
          s_waitcnt lgkmcnt(0)""")
    a.raw("K1_NOSCAN:")
    a(f"""s_barrier
          ds_read_b32 v82, v74 offset:{STARTS}
          ds_read_b32 v83, v75 offset:{STARTS}
          v_lshrrev_b32 v100, 1, v0
          v_lshlrev_b32 v100, 2, v100
          ds_read_b32 v84, v100 offset:{BR}
          ds_read_b32 v85, v100 offset:{BR+1280}
          ds_read_b32 v86, v100 offset:{BR+2560}
          ds_read_b32 v87, v100 offset:{BR+3840}
          s_mul_i32 s60, s23, {RECB}
          s_add_u32 s60, s60, {hex(REC_OFF)}
          s_add_u32 s61, s60, 32
          v_and_b32 v101, 1, v0
          v_lshlrev_b32 v101, 4, v101
          s_waitcnt lgkmcnt(4)
          v_add_u32 v82, v82, v76
          v_add_u32 v83, v83, v77
          v_mul_u32_u24 v82, {RECB}, v82
          v_mul_u32_u24 v83, {RECB}, v83
          s_waitcnt lgkmcnt(0)
          v_and_b32 v88, 0xff, v84
          v_and_b32 v89, 0xff, v85
          v_and_b32 v90, 0xff, v86
          v_and_b32 v91, 0xff, v87
          v_lshlrev_b32 v88, 2, v88
          v_lshlrev_b32 v89, 2, v89
          v_lshlrev_b32 v90, 2, v90
          v_lshlrev_b32 v91, 2, v91
          ds_read_b32 v88, v88 offset:{STARTS}
          ds_read_b32 v89, v89 offset:{STARTS}
          ds_read_b32 v90, v90 offset:{STARTS}
          ds_read_b32 v91, v91 offset:{STARTS}
          s_waitcnt vmcnt(20)
          buffer_store_dwordx4 v[12:15], v82, s[{sWS}:{sWS+3}], s61 offen {ST_EA}
          buffer_store_dwordx4 v[16:19], v83, s[{sWS}:{sWS+3}], s61 offen {ST_EA}
          v_lshrrev_b32 v84, 8, v84
          v_lshrrev_b32 v85, 8, v85
          v_lshrrev_b32 v86, 8, v86
          v_lshrrev_b32 v87, 8, v87
          s_waitcnt lgkmcnt(0)
          v_add_u32 v88, v88, v84
          v_add_u32 v89, v89, v85
          v_add_u32 v90, v90, v86
          v_add_u32 v91, v91, v87
          v_mad_u32_u24 v88, v88, {RECB}, v101
          v_mad_u32_u24 v89, v89, {RECB}, v101
          v_mad_u32_u24 v90, v90, {RECB}, v101
          v_mad_u32_u24 v91, v91, {RECB}, v101
          s_waitcnt vmcnt(18)
          buffer_store_dwordx4 v[20:23], v88, s[{sWS}:{sWS+3}], s60 offen {ST_EA}
          buffer_store_dwordx4 v[24:27], v89, s[{sWS}:{sWS+3}], s60 offen {ST_EA}
          buffer_store_dwordx4 v[28:31], v90, s[{sWS}:{sWS+3}], s60 offen {ST_EA}
          buffer_store_dwordx4 v[32:35], v91, s[{sWS}:{sWS+3}], s60 offen {ST_EA}
          s_mov_b32 s62, 0x05040100
          s_mov_b32 s63, 0x07060302
          v_lshlrev_b32 v102, 2, v4""")
    for k in range(4):
        younger = (16-4*(k+1)) + 6 + k
        o=52+4*k
        a(f"""s_waitcnt vmcnt({younger})
              v_perm_b32 v{o}, v{36+4*k+1}, v{36+4*k}, s62
              v_perm_b32 v{o+1}, v{36+4*k+3}, v{36+4*k+2}, s62
              v_perm_b32 v{o+2}, v{36+4*k+1}, v{36+4*k}, s63
              v_perm_b32 v{o+3}, v{36+4*k+3}, v{36+4*k+2}, s63
              buffer_store_dwordx4 v[{o}:{o+3}], v102, s[{sWS}:{sWS+3}], s59 offen offset:{k*1024} {ST_X}""")
    a(f"""s_cmp_ge_u32 s2, 32
          s_cbranch_scc1 K1_END
          s_cmp_ge_u32 s22, 4
          s_cbranch_scc1 K1_END
          v_lshl_or_b32 v68, v69, 16, v68
          s_lshl_b32 s60, s2, 10
          s_add_u32 s60, s60, {hex(WOF_OFF)}
          buffer_store_dword v68, v1, s[{sWS}:{sWS+3}], s60 offen""")
    a.raw("K1_END:")
    a("s_endpgm")

K1_DESC="""
.amdhsa_kernel mace_prep_kernel
  .amdhsa_next_free_vgpr 104
  .amdhsa_next_free_sgpr 72
  .amdhsa_accum_offset 104
  .amdhsa_group_segment_fixed_size 0
  .amdhsa_kernarg_size 88
  .amdhsa_user_sgpr_count 2
  .amdhsa_user_sgpr_kernarg_segment_ptr 1
  .amdhsa_system_sgpr_workgroup_id_x 1
  .amdhsa_float_denorm_mode_32 3
.end_amdhsa_kernel
"""

CAPW=192
RECL_SZ=(CAPW+1)*RECB
OFFP_OFF=RECL_SZ
BINS_OFF=OFFP_OFF+1024
WSZ=BINS_OFF+256
CNT_SZ=64
WOFL=CNT_SZ+NW*WSZ
K2_LDS=WOFL+32768
assert WSZ%16==0 and WOFL%16==0 and K2_LDS<=163840

def gen_k2(a, opt):
    U=opt.get('U',4)
    USEPK=opt.get('pk',False)
    BSH=opt.get('bucket_shift',18)
    TS=opt.get('ts',False)
    sXT,sREC,sTB,sWOF,sOUT,sWR,sCG=12,16,20,24,28,32,36
    mQ012,mQ2,mW0,mW1,mW3,mH0,mH1=40,42,44,46,48,50,52
    sW,sWB,sN,sNw,sMode,sWb,sRounds,sSH=54,55,56,57,58,59,60,61
    t0,t1,t2,t3,t4,t5=62,63,64,65,66,67
    sRem=68; sCAP=69
    KR=70; NKR=U+2
    VM=78
    vLane,vL16,vOne,vO,vOn,vE,vS=1,2,3,4,5,6,7
    B1e,B2e,B1o,B2o=8,12,16,20
    P=[24,26,28,30]
    ACC=32; RWE=64; RWO=80; X=96; T=120; A=136
    vEad,vSad,vOad,vKH,vt0,vt1=138,139,140,141,142,143
    R1,R2=144,148; S=[152,154,156,158]
    vShare,vPre,vA0,vRecQ,vQ16B,vLrd,vq16,vTB=160,161,162,163,164,165,166,167
    REC=64
    VF=120
    assert X+4*U<=T

    def ts(i):
        if not TS: return
        a(f"""s_memrealtime s[6:7]
              s_waitcnt lgkmcnt(0)
              v_mov_b32 v{vt0}, s6
              v_mov_b32 v{vt1}, {4*i}
              s_or_b32 s8, s2, s{sW}
              s_cmp_lg_u32 s8, 0
              s_cbranch_scc1 TS_{i}
              global_store_dword v{vt1}, v{vt0}, s[4:5]
              TS_{i}:""")

    a.raw(".p2align 8")
    a.raw(".type standalone__tensor_product_equiv_mace__graph_kernel,@function")
    a.raw("standalone__tensor_product_equiv_mace__graph_kernel:")
    a(f"""s_cmp_ge_u32 s2, {NB}
          s_cbranch_scc1 K2_END
          s_load_dwordx4 s[4:7], s[0:1], 40
          s_load_dwordx2 s[8:9], s[0:1], 64
          s_load_dwordx2 s[10:11], s[0:1], 80
          v_and_b32 v{vLane}, 63, v0
          v_lshrrev_b32 v{vt0}, 6, v0
          v_lshlrev_b32 v{vL16}, 4, v{vLane}
          v_readfirstlane_b32 s{sW}, v{vt0}
          v_mov_b32 v{vOne}, 1
          s_mov_b32 s{mQ012}, 0x77777777
          s_mov_b32 s{mQ012+1}, 0x77777777
          s_mov_b32 s{mQ2}, 0x44444444
          s_mov_b32 s{mQ2+1}, 0x44444444
          s_mov_b32 s{mW0}, 0x11111111
          s_mov_b32 s{mW0+1}, 0x11111111
          s_mov_b32 s{mW1}, 0x22222222
          s_mov_b32 s{mW1+1}, 0x22222222
          s_mov_b32 s{mW3}, 0x88888888
          s_mov_b32 s{mW3+1}, 0x88888888
          s_mov_b32 s{mH0}, 0x0f0f0f0f
          s_mov_b32 s{mH0+1}, 0x0f0f0f0f
          s_mov_b32 s{mH1}, 0xf0f0f0f0
          s_mov_b32 s{mH1+1}, 0xf0f0f0f0
          s_mul_i32 s{sWB}, s{sW}, {WSZ}
          s_add_u32 s{sWB}, s{sWB}, {CNT_SZ}
          s_add_u32 s{sSH}, s{sWB}, 32
          s_mov_b32 s{sCAP}, {CAPW}
          s_mov_b32 s{sMode}, 0
          v_and_b32 v{vt0}, 3, v{vLane}
          v_lshrrev_b32 v{vt1}, 2, v{vLane}
          v_lshlrev_b32 v{vq16}, 4, v{vt0}
          v_add_u32 v{vQ16B}, {CNT_SZ}, v{vq16}
          v_cmp_ne_u32 vcc, 3, v{vt0}
          v_lshlrev_b32 v{vLrd}, 2, v{vt1}
          v_add_u32 v{vLrd}, s{sWB}, v{vLrd}
          v_mov_b32 v{vRecQ}, 0xffff
          v_cndmask_b32 v{vRecQ}, v{vRecQ}, v{vt1}, vcc
          v_add_u32 v{vLrd}, {OFFP_OFF}, v{vLrd}
          v_lshrrev_b32 v{vt0}, 1, v{vLane}
          v_lshlrev_b32 v{vt0}, 2, v{vt0}
          v_mov_b32 v{vTB}, 0
          s_lshl_b32 s{t0}, s2, 10
          s_mul_i32 s{t1}, s{sW}, 100
          s_add_u32 s{t0}, s{t0}, s{t1}
          s_waitcnt lgkmcnt(0)""")
    srd(a,sTB,10,11,TBL_SZ,TBL_OFF)
    a(f"""v_cmpx_gt_u32 vcc, 50, v{vLane}
          buffer_load_dword v{vTB}, v{vt0}, s[{sTB}:{sTB+3}], s{t0} offen
          s_mov_b64 exec, -1""")
    srd(a,sWOF,10,11,WOF_SZ,WOF_OFF)
    srd(a,sREC,10,11,REC_SZ,REC_OFF)
    srd(a,sXT,10,11,XT_SZ,XT_OFF)
    srd(a,sOUT,8,9,N*1024)
    srd(a,sWR,6,7,4096)
    srd(a,sCG,4,5,128)
    if TS:
        a("s_load_dwordx2 s[4:5], s[0:1], 72")
    a(f"s_lshl_b32 s{t0}, s{sW}, 10")
    for k in range(3):
        a(f"""s_add_u32 m0, s{t0}, {WOFL+k*10240}
              s_add_u32 s{t1}, s{t0}, {k*10240}
              buffer_load_dwordx4 v{vL16}, s[{sWOF}:{sWOF+3}], s{t1} offen lds""")
    a(f"""s_cmp_ge_u32 s{sW}, 2
          s_cbranch_scc1 K2_WOF3
          s_add_u32 m0, s{t0}, {WOFL+30720}
          s_add_u32 s{t1}, s{t0}, 30720
          buffer_load_dwordx4 v{vL16}, s[{sWOF}:{sWOF+3}], s{t1} offen lds
          K2_WOF3:""")
    a(f"""v_lshlrev_b32 v{vt0}, 2, v{vLane}
          v_mov_b32 v{vt1}, 0
          s_cmp_lg_u32 s{sW}, 0
          s_cbranch_scc1 K2_NOCNT
          v_cmpx_gt_u32 vcc, 16, v{vLane}
          ds_write_b32 v{vt0}, v{vt1}
          s_mov_b64 exec, -1
          K2_NOCNT:
          v_add_u32 v{vt0}, s{sWB}, v{vt0}
          v_mov_b32 v{vE}, 0xffffff00
          ds_write_b32 v{vt0}, v{vt1} offset:{BINS_OFF}
          ds_write_b32 v{vt0}, v{vE} offset:{OFFP_OFF}
          ds_write_b32 v{vt0}, v{vE} offset:{OFFP_OFF+256}
          ds_write_b32 v{vt0}, v{vE} offset:{OFFP_OFF+512}
          ds_write_b32 v{vt0}, v{vE} offset:{OFFP_OFF+768}
          s_waitcnt lgkmcnt(0)
          s_barrier""")
    ts(0)
    a(f"""v_and_b32 v{vt1}, 1, v{vLane}
          s_waitcnt vmcnt(3)
          v_lshrrev_b32 v{vShare}, 19, v{vTB}
          v_and_b32 v{vA0}, 0x7ffff, v{vTB}
          v_add_u32 v{vA0}, v{vA0}, v{vt1}
          v_mul_u32_u24 v{vA0}, {RECB}, v{vA0}
          v_xor_b32 v{vt1}, 1, v{vt1}
          v_add_u32 v{vShare}, v{vShare}, v{vt1}
          v_lshrrev_b32 v{vShare}, 1, v{vShare}
          v_mov_b32 v{vPre}, v{vShare}""")
    scan_incl(a,vPre)
    a(f"""s_nop 0
          v_readlane_b32 s{sNw}, v{vPre}, 63
          v_sub_u32 v{vPre}, v{vPre}, v{vShare}
          s_nop 1
          s_cmp_le_u32 s{sNw}, {CAPW}
          s_cbranch_scc1 K2_LISTN
          v_mov_b32 v{vt0}, 48
          v_mov_b32 v{vt1}, 0xffff
          ds_write_b32 v{vt0}, v{vt1}
          s_branch K2_PLACED_N
          K2_LISTN:
          v_lshlrev_b32 v{vE}, 2, v{vPre}
          v_add_u32 v{vE}, s{sWB}, v{vE}
          v_mov_b32 v{vS}, v{vShare}
          v_mov_b32 v{vO}, v{vA0}
          K2_L1:
          v_cmpx_lt_u32 vcc, 0, v{vS}
          ds_write_b32 v{vE}, v{vO} offset:{OFFP_OFF}
          v_add_u32 v{vt0}, 96, v{vO}
          v_cmpx_lt_u32 vcc, 1, v{vS}
          ds_write_b32 v{vE}, v{vt0} offset:{OFFP_OFF+4}
          v_add_u32 v{vt1}, 192, v{vO}
          v_cmpx_lt_u32 vcc, 2, v{vS}
          ds_write_b32 v{vE}, v{vt1} offset:{OFFP_OFF+8}
          v_add_u32 v{vt0}, 288, v{vO}
          v_cmpx_lt_u32 vcc, 3, v{vS}
          ds_write_b32 v{vE}, v{vt0} offset:{OFFP_OFF+12}
          v_subrev_u32 v{vS}, 4, v{vS}
          v_add_u32 v{vO}, 384, v{vO}
          v_add_u32 v{vE}, 16, v{vE}
          s_cbranch_execnz K2_L1
          s_mov_b64 exec, -1
          s_waitcnt lgkmcnt(0)""")
    NIT=12
    for it in range(NIT):
        a(f"ds_read_b32 v{VF+it}, v{vLrd} offset:{64*it}")
    a(f"""s_waitcnt lgkmcnt(0)
          s_mov_b64 exec, s[{mQ012}:{mQ012+1}]""")
    for it in range(NIT):
        a(f"""v_add_u32 v{VF+it}, v{VF+it}, v{vq16}
              buffer_load_dwordx4 v[{REC+4*it}:{REC+4*it+3}], v{VF+it}, s[{sREC}:{sREC+3}], 0 offen""")
    a("s_mov_b64 exec, -1")
    ts(1)
    WRAW=32; CRAW=48
    a(f"""v_lshrrev_b32 v{vt0}, 5, v{vLane}
          v_lshlrev_b32 v{vt0}, 11, v{vt0}
          v_and_b32 v{vt1}, 31, v{vLane}
          v_lshl_or_b32 v{vt0}, v{vt1}, 2, v{vt0}
          v_and_b32 v{vt1}, 3, v{vLane}
          v_lshlrev_b32 v{vt1}, 5, v{vt1}""")
    for h in range(2):
        for jj in range(8):
            a(f"buffer_load_dword v{WRAW+8*h+jj}, v{vt0}, s[{sWR}:{sWR+3}], 0 offen offset:{jj*256+h*128}")
    a(f"""buffer_load_dwordx4 v[{CRAW}:{CRAW+3}], v{vt1}, s[{sCG}:{sCG+3}], 0 offen
          buffer_load_dwordx4 v[{CRAW+4}:{CRAW+7}], v{vt1}, s[{sCG}:{sCG+3}], 0 offen offset:16""")
    for it in range(NIT):
        a(f"""s_sub_i32 s{t0}, s{sNw}, {16*it}
              s_max_i32 s{t0}, s{t0}, 0
              v_cmp_gt_u32 s[{VM+2*it}:{VM+2*it+1}], s{t0}, v{vRecQ}""")
    a("s_waitcnt vmcnt(18)")
    ts(2)
    def chk(it,label):
        if it>=8:
            a(f"""s_cmp_le_u32 s{sNw}, {16*it}
                  s_cbranch_scc1 {label}""")
    for it in range(NIT):
        chk(it,"K2_ATOM_DONE")
        r=REC+4*it
        a(f"""s_and_b64 exec, s[{VM+2*it}:{VM+2*it+1}], s[{mQ2}:{mQ2+1}]
              v_and_b32 v{vt0}, 0x3c, v{r+2}
              ds_add_rtn_u32 v{r+3}, v{vt0}, v{vOne}""")
    a(f"""K2_ATOM_DONE:
          s_mov_b64 exec, s[{mQ2}:{mQ2+1}]
          s_waitcnt lgkmcnt(0)""")
    for it in range(NIT):
        chk(it,"K2_P1_DONE")
        r=REC+4*it
        a(f"""v_and_b32 v{vt0}, 0x3c, v{r+2}
              v_min_u32 v{vt1}, s{sCAP}, v{r+3}
              v_mul_u32_u24 v{vt0}, {WSZ//4}, v{vt0}
              v_mad_u32_u24 v{r+3}, v{vt1}, {RECB}, v{vt0}""")
    a("K2_P1_DONE:")
    a("s_nop 1")
    for it in range(NIT):
        chk(it,"K2_P2_DONE")
        r=REC+4*it
        a(f"""s_mov_b64 exec, s[{VM+2*it}:{VM+2*it+1}]
              v_add_u32_dpp v{VF+it}, v{r+3}, v{vQ16B} quad_perm:[2,2,2,2] row_mask:0xf bank_mask:0xf
              ds_write_b128 v{VF+it}, v[{r}:{r+3}]""")
    a(f"""K2_P2_DONE:
          s_mov_b64 exec, -1
          K2_PLACED_N:
          s_waitcnt vmcnt(0)""")
    a.l.pop(); a.l.pop()
    a("s_branch K2_FRAGS")
    a(f"""K2_PLACED_N:
          v_lshrrev_b32 v{vt0}, 5, v{vLane}
          v_lshlrev_b32 v{vt0}, 11, v{vt0}
          v_and_b32 v{vt1}, 31, v{vLane}
          v_lshl_or_b32 v{vt0}, v{vt1}, 2, v{vt0}
          v_and_b32 v{vt1}, 3, v{vLane}
          v_lshlrev_b32 v{vt1}, 5, v{vt1}""")
    for h in range(2):
        for jj in range(8):
            a(f"buffer_load_dword v{WRAW+8*h+jj}, v{vt0}, s[{sWR}:{sWR+3}], 0 offen offset:{jj*256+h*128}")
    a(f"""buffer_load_dwordx4 v[{CRAW}:{CRAW+3}], v{vt1}, s[{sCG}:{sCG+3}], 0 offen
          buffer_load_dwordx4 v[{CRAW+4}:{CRAW+7}], v{vt1}, s[{sCG}:{sCG+3}], 0 offen offset:16""")
    a(f"""K2_FRAGS:
          s_mov_b32 s{t0}, 0x05040100
          s_mov_b32 s{t1}, 0x07060302
          s_waitcnt vmcnt(0)""")
    for h,(be,bo) in enumerate([(B1e,B1o),(B2e,B2o)]):
        for p in range(4):
            a(f"""v_perm_b32 v{be+p}, v{WRAW+8*h+2*p+1}, v{WRAW+8*h+2*p}, s{t0}
                  v_perm_b32 v{bo+p}, v{WRAW+8*h+2*p+1}, v{WRAW+8*h+2*p}, s{t1}""")
    for w in range(4):
        sel=t0 if (w&1)==0 else t1
        a(f"""v_perm_b32 v{P[w]}, v{CRAW+2+(w>>1)}, v{CRAW+(w>>1)}, s{sel}
              v_perm_b32 v{P[w]+1}, v{CRAW+6+(w>>1)}, v{CRAW+4+(w>>1)}, s{sel}""")
    for i in range(32): a(f"v_mov_b32 v{ACC+i}, 0")
    for i in range(R1,R1+16): a(f"v_mov_b32 v{i}, 0")
    a(f"""v_lshrrev_b32 v{vKH}, 5, v{vLane}
          v_lshlrev_b32 v{vKH}, 4, v{vKH}
          v_add_u32 v{vKH}, s{sWB}, v{vKH}
          s_waitcnt lgkmcnt(0)
          s_barrier""")
    ts(3)
    a(f"""K2_AFTER:
          v_lshlrev_b32 v{vt0}, 2, v{vLane}
          v_and_b32 v{vt0}, 63, v{vt0}
          ds_read_b32 v{vt1}, v{vt0}
          s_waitcnt lgkmcnt(0)
          v_readlane_b32 s{sN}, v{vt1}, s{sW}
          s_cmp_lg_u32 s{sMode}, 0
          s_cbranch_scc1 K2_SORT
          v_cmp_lt_u32 vcc, s{sCAP}, v{vt1}
          s_cbranch_vccnz K2_SLOW_INIT
          K2_SORT:""")
    a(f"""v_lshlrev_b32 v{vt0}, 2, v{vLane}
          v_add_u32 v{vt0}, s{sWB}, v{vt0}
          v_mov_b32 v{vt1}, 0
          ds_write_b32 v{vt0}, v{vt1} offset:{OFFP_OFF}
          ds_write_b32 v{vt0}, v{vt1} offset:{OFFP_OFF+256}
          ds_write_b32 v{vt0}, v{vt1} offset:{OFFP_OFF+512}
          ds_write_b32 v{vt0}, v{vt1} offset:{OFFP_OFF+768}
          v_mul_u32_u24 v{vE}, {RECB}, v{vLane}
          v_add_u32 v{vE}, s{sWB}, v{vE}
          s_add_u32 s{t2}, s{sWB}, {BINS_OFF}""")
    KEY=[120,121,122]; BA=[123,124,125]; RK=[126,127,128]; ST=[129,130,131]; VAL=[132,133,134]
    for i in range(3):
        a(f"ds_read_b32 v{KEY[i]}, v{vE} offset:{40+i*64*RECB}")
    a("s_waitcnt lgkmcnt(0)")
    for i in range(3):
        a(f"""s_sub_i32 s{t0}, s{sN}, {64*i}
              s_max_i32 s{t0}, s{t0}, 0
              v_cmp_gt_u32 s[{VM+2*i}:{VM+2*i+1}], s{t0}, v{vLane}
              v_lshrrev_b32 v{BA[i]}, {BSH}, v{KEY[i]}
              v_lshlrev_b32 v{BA[i]}, 2, v{BA[i]}
              v_add_u32 v{BA[i]}, s{t2}, v{BA[i]}""")
    for i in range(3):
        a(f"""s_mov_b64 exec, s[{VM+2*i}:{VM+2*i+1}]
              ds_add_rtn_u32 v{RK[i]}, v{BA[i]}, v{vOne}""")
    a(f"""s_mov_b64 exec, -1
          s_mov_b32 s{t3}, 0xfffc00""")
    for i in range(3):
        a(f"""v_and_b32 v{VAL[i]}, s{t3}, v{KEY[i]}
              v_lshlrev_b32 v{vt1}, 3, v{KEY[i]}
              v_and_or_b32 v{VAL[i]}, v{vt1}, 24, v{VAL[i]}
              v_add_u32 v{vt1}, {64*i}, v{vLane}
              v_lshl_or_b32 v{VAL[i]}, v{vt1}, 24, v{VAL[i]}""")
    a(f"""s_waitcnt lgkmcnt(0)
          ds_read_b32 v{vS}, v{vt0} offset:{BINS_OFF}
          s_waitcnt lgkmcnt(0)
          v_mov_b32 v{vO}, v{vS}""")
    scan_incl(a,vO)
    a(f"""v_sub_u32 v{vO}, v{vO}, v{vS}
          ds_write_b32 v{vt0}, v{vO} offset:{BINS_OFF}
          s_waitcnt lgkmcnt(0)""")
    for i in range(3):
        a(f"ds_read_b32 v{ST[i]}, v{BA[i]}")
    a("s_waitcnt lgkmcnt(0)")
    for i in range(3):
        a(f"""v_add_u32 v{ST[i]}, v{ST[i]}, v{RK[i]}
              v_lshlrev_b32 v{ST[i]}, 2, v{ST[i]}
              v_add_u32 v{ST[i]}, s{sWB}, v{ST[i]}
              s_mov_b64 exec, s[{VM+2*i}:{VM+2*i+1}]
              ds_write_b32 v{ST[i]}, v{VAL[i]} offset:{OFFP_OFF}
              s_mov_b64 exec, -1""")
    ts(4)
    a(f"""s_cmp_eq_u32 s{sN}, 0
          s_cbranch_scc1 K2_MAIN_DONE
          s_add_u32 s{t2}, s{sWB}, {OFFP_OFF}
          v_and_b32 v{vt0}, 31, v{vLane}
          v_lshlrev_b32 v{vOad}, 2, v{vt0}
          v_add_u32 v{vOad}, s{t2}, v{vOad}
          v_lshrrev_b32 v{vt1}, 3, v{vt0}
          v_lshlrev_b32 v{vt1}, 2, v{vt1}
          v_and_or_b32 v{vt1}, v{vt0}, 3, v{vt1}
          v_lshlrev_b32 v{vEad}, 2, v{vt1}
          v_add_u32 v{vEad}, s{t2}, v{vEad}
          v_lshrrev_b32 v{vt0}, 2, v{vLane}
          v_lshlrev_b32 v{vSad}, 2, v{vt0}
          v_add_u32 v{vSad}, s{t2}, v{vSad}
          s_waitcnt lgkmcnt(0)
          ds_read_b32 v{vO}, v{vOad}
          ds_read_b32 v{vE}, v{vEad}
          ds_read_b32 v{vS}, v{vSad}
          s_mov_b32 s{sRem}, s{sN}
          s_mov_b32 s{t3}, 0xfffc00
          s_waitcnt lgkmcnt(0)""")
    def operand_reads():
        a(f"""v_lshrrev_b32 v{vt0}, 24, v{vE}
              v_lshrrev_b32 v{vt1}, 24, v{vS}
              v_mad_u32_u24 v{vt0}, v{vt0}, {RECB}, v{vKH}
              v_mad_u32_u24 v{vt1}, v{vt1}, {RECB}, s{sSH}
              s_mov_b64 exec, s[{mH0}:{mH0+1}]
              ds_read_b128 v[{R1}:{R1+3}], v{vt0}
              s_mov_b64 exec, s[{mH1}:{mH1+1}]
              ds_read_b128 v[{R2}:{R2+3}], v{vt0}
              s_mov_b64 exec, s[{mW0}:{mW0+1}]
              ds_read_b64 v[{S[0]}:{S[0]+1}], v{vt1}
              s_mov_b64 exec, s[{mW1}:{mW1+1}]
              ds_read_b64 v[{S[1]}:{S[1]+1}], v{vt1}
              s_mov_b64 exec, s[{mQ2}:{mQ2+1}]
              ds_read_b64 v[{S[2]}:{S[2]+1}], v{vt1}
              s_mov_b64 exec, s[{mW3}:{mW3+1}]
              ds_read_b64 v[{S[3]}:{S[3]+1}], v{vt1}
              s_mov_b64 exec, -1""")
    operand_reads()
    def kr(e): return KR+(e%NKR)
    def readk(e,lane,vsrc):
        a(f"v_readlane_b32 s{kr(e)}, v{vsrc}, {lane}")
    def issue(e):
        a(f"""s_and_b32 s{t4}, s{kr(e)}, s{t3}
              buffer_load_dwordx4 v[{X+4*(e%U)}:{X+4*(e%U)+3}], v{vL16}, s[{sXT}:{sXT+3}], s{t4} offen""")
    NKR=8
    assert U+2<=8 and 16%U==0 or True
    assert 16%U==0, "U must divide 16"
    for e in range(U+1): readk(e,e,vO)
    a("s_nop 3")
    for e in range(U): issue(e)
    def batch(tail,lab):
        a(f"""s_waitcnt lgkmcnt(0)
              v_mfma_f32_4x4x4_16b_bf16 v[{T}:{T+3}], v[{P[0]}:{P[0]+1}], v[{S[0]}:{S[0]+1}], 0
              v_mfma_f32_32x32x16_bf16 v[{RWE}:{RWE+15}], v[{R1}:{R1+3}], v[{B1e}:{B1e+3}], 0
              s_nop 0
              v_mfma_f32_4x4x4_16b_bf16 v[{T}:{T+3}], v[{P[1]}:{P[1]+1}], v[{S[1]}:{S[1]+1}], v[{T}:{T+3}]
              v_mfma_f32_32x32x16_bf16 v[{RWO}:{RWO+15}], v[{R1}:{R1+3}], v[{B1o}:{B1o+3}], 0
              s_nop 0
              v_mfma_f32_4x4x4_16b_bf16 v[{T}:{T+3}], v[{P[2]}:{P[2]+1}], v[{S[2]}:{S[2]+1}], v[{T}:{T+3}]
              v_mfma_f32_32x32x16_bf16 v[{RWE}:{RWE+15}], v[{R2}:{R2+3}], v[{B2e}:{B2e+3}], v[{RWE}:{RWE+15}]
              s_nop 0
              v_mfma_f32_4x4x4_16b_bf16 v[{T}:{T+3}], v[{P[3]}:{P[3]+1}], v[{S[3]}:{S[3]+1}], v[{T}:{T+3}]
              v_mfma_f32_32x32x16_bf16 v[{RWO}:{RWO+15}], v[{R2}:{R2+3}], v[{B2o}:{B2o+3}], v[{RWO}:{RWO+15}]
              v_add_u32 v{vOad}, 64, v{vOad}
              v_add_u32 v{vEad}, 64, v{vEad}
              v_add_u32 v{vSad}, 64, v{vSad}
              ds_read_b32 v{vOn}, v{vOad}
              ds_read_b32 v{vE}, v{vEad}
              ds_read_b32 v{vS}, v{vSad}
              v_cvt_pk_bf16_f32 v{A}, v{T}, v{T+1}
              v_cvt_pk_bf16_f32 v{A+1}, v{T+2}, v{T+3}
              s_waitcnt vmcnt({U-1})
              s_nop 0""")
        def tp(e):
            tb=T+8*(e%2); xb=X+4*(e%U)
            a(f"""v_mfma_f32_4x4x4_16b_bf16 v[{tb}:{tb+3}], v[{A}:{A+1}], v[{xb}:{xb+1}], 0 cbsz:4 abid:{e}
                  v_mfma_f32_4x4x4_16b_bf16 v[{tb+4}:{tb+7}], v[{A}:{A+1}], v[{xb+2}:{xb+3}], 0 cbsz:4 abid:{e}""")
        tp(0)
        for e in range(16):
            readk(e+U+1, e+U+1, vO)
            issue(e+U)
            if e<15:
                a(f"s_waitcnt vmcnt({U-1})")
                tp(e+1)
            else:
                a("s_nop 3")
            if e==0:
                a("s_nop 3")
            tb=T+8*(e%2)
            a(f"""s_and_b32 s{t5}, s{kr(e)}, 24
                  s_set_gpr_idx_on s{t5}, gpr_idx(DST)""" if not USEPK else
              f"""s_and_b32 s{t5}, s{kr(e)}, 24
                  s_set_gpr_idx_on s{t5}, gpr_idx(SRC2,DST)""")
            if USEPK:
                pe=RWE+(e&~1); po=RWO+(e&~1); sel=e&1
                for (base,rw,tt) in ((0,pe,tb),(2,pe,tb+2),(4,po,tb+4),(6,po,tb+6)):
                    a(f"v_pk_fma_f32 v[{ACC+base}:{ACC+base+1}], v[{tt}:{tt+1}], v[{rw}:{rw+1}], v[{ACC+base}:{ACC+base+1}] op_sel:[0,{sel},0] op_sel_hi:[1,{sel},1]")
            else:
                for w in range(4): a(f"v_fmac_f32 v{ACC+w}, v{tb+w}, v{RWE+e}")
                for w in range(4): a(f"v_fmac_f32 v{ACC+4+w}, v{tb+4+w}, v{RWO+e}")
            a("s_set_gpr_idx_off")
            if tail:
                a(f"""s_cmp_eq_u32 s{sRem}, {e+1}
                      s_cbranch_scc1 K2_MAIN_DONE""")
            if e==4:
                a("s_waitcnt lgkmcnt(0)")
                operand_reads()
        a(f"v_mov_b32 v{vO}, v{vOn}")
    a(f"""K2_LOOP:
          s_cmp_lt_u32 s{sRem}, 17
          s_cbranch_scc1 K2_TAIL""")
    batch(False,"F")
    a(f"""s_sub_u32 s{sRem}, s{sRem}, 16
          s_branch K2_LOOP
          K2_TAIL:""")
    batch(True,"T")
    a(f"""K2_MAIN_DONE:
          s_mov_b64 exec, -1
          s_waitcnt vmcnt(0) lgkmcnt(0)""")
    ts(5)
    a(f"""s_cmp_lg_u32 s{sMode}, 0
          s_cbranch_scc1 K2_SLOW_NEXT""")
    a(f"""K2_EPI:
          v_lshlrev_b32 v{vt0}, 2, v{vLane}
          v_add_u32 v{vt0}, s{sWB}, v{vt0}""")
    for k in range(4):
        for w in range(4):
            n=4*k+w
            a(f"""v_cvt_pk_bf16_f32 v{RWE+n}, v{ACC+8*k+w}, v{ACC+8*k+4+w}""")
    for n in range(16):
        a(f"ds_write_b32 v{vt0}, v{RWE+n} offset:{n*272}")
    a(f"""v_and_b32 v{vt1}, 15, v{vLane}
          v_mul_u32_u24 v{vt1}, 272, v{vt1}
          v_lshrrev_b32 v{vE}, 4, v{vLane}
          v_lshl_add_u32 v{vt1}, v{vE}, 4, v{vt1}
          v_add_u32 v{vt1}, s{sWB}, v{vt1}
          v_add_u32 v{vS}, {WOFL}, v{vL16}
          s_waitcnt lgkmcnt(0)""")
    BO=RWO
    for kb in range(4):
        a(f"ds_read_b128 v[{BO+4*kb}:{BO+4*kb+3}], v{vt1} offset:{kb*64}")
    FB=[X,T]
    DO=ACC
    def rd(t):
        fb=FB[t%2]
        for kb in range(4):
            a(f"ds_read_b128 v[{fb+4*kb}:{fb+4*kb+3}], v{vS} offset:{(t*4+kb)*1024}")
    rd(0)
    for t in range(8):
        if t<7:
            rd(t+1)
            a("s_waitcnt lgkmcnt(4)")
        else:
            a("s_waitcnt lgkmcnt(0)")
        fb=FB[t%2]
        for kb in range(4):
            c="0" if kb==0 else f"v[{DO+4*t}:{DO+4*t+3}]"
            a(f"v_mfma_f32_16x16x32_bf16 v[{DO+4*t}:{DO+4*t+3}], v[{fb+4*kb}:{fb+4*kb+3}], v[{BO+4*kb}:{BO+4*kb+3}], {c}")
    a(f"""v_and_b32 v{vt0}, 15, v{vLane}
          v_lshlrev_b32 v{vt0}, 8, v{vt0}
          v_lshrrev_b32 v{vt1}, 4, v{vLane}
          v_lshl_add_u32 v{vt0}, v{vt1}, 4, v{vt0}
          s_mul_i32 s{t0}, s2, {NPB*1024}
          s_lshl_b32 s{t1}, s{sW}, 12
          s_add_u32 s{t0}, s{t0}, s{t1}
          s_nop 7""")
    for i in range(4):
        o=RWE+4*i
        for p in range(2):
            a(f"v_cvt_pk_bf16_f32 v{o+2*p}, v{DO+8*i+2*p}, v{DO+8*i+2*p+1}" if False else
              f"v_cvt_pk_bf16_f32 v{o+p}, v{DO+8*i+2*p}, v{DO+8*i+2*p+1}")
        for p in range(2):
            a(f"v_cvt_pk_bf16_f32 v{o+2+p}, v{DO+8*i+4+2*p}, v{DO+8*i+4+2*p+1}")
        a(f"buffer_store_dwordx4 v[{o}:{o+3}], v{vt0}, s[{sOUT}:{sOUT+3}], s{t0} offen offset:{64*i}")
    a("s_endpgm")
    a(f"""K2_SLOW_INIT:
          s_mov_b32 s{sMode}, 1
          s_mov_b32 s{sWb}, 0
          s_barrier
          v_mov_b32 v{vt0}, 52
          v_mov_b32 v{vt1}, s{sNw}
          ds_max_u32 v{vt0}, v{vt1}
          s_waitcnt lgkmcnt(0)
          s_barrier
          ds_read_b32 v{vt1}, v{vt0}
          s_waitcnt lgkmcnt(0)
          v_readfirstlane_b32 s{sRounds}, v{vt1}
          s_branch K2_SLOW_ROUND
          K2_SLOW_NEXT:
          s_add_u32 s{sWb}, s{sWb}, 16
          s_cmp_ge_u32 s{sWb}, s{sRounds}
          s_cbranch_scc1 K2_EPI
          K2_SLOW_ROUND:
          s_barrier
          v_lshlrev_b32 v{vt0}, 2, v{vLane}
          v_mov_b32 v{vt1}, 0
          s_cmp_lg_u32 s{sW}, 0
          s_cbranch_scc1 K2_SLOW_NOCNT
          v_cmpx_gt_u32 vcc, 12, v{vLane}
          ds_write_b32 v{vt0}, v{vt1}
          s_mov_b64 exec, -1
          K2_SLOW_NOCNT:
          v_add_u32 v{vt0}, s{sWB}, v{vt0}
          v_mov_b32 v{vE}, 0xffffff00
          ds_write_b32 v{vt0}, v{vt1} offset:{BINS_OFF}
          ds_write_b32 v{vt0}, v{vE} offset:{OFFP_OFF}
          v_subrev_u32 v{vE}, s{sWb}, v{vPre}
          v_mov_b32 v{vO}, v{vA0}
          s_mov_b32 s{t0}, 0
          s_waitcnt lgkmcnt(0)
          s_barrier
          K2_SL1:
          v_cmp_lt_u32 vcc, s{t0}, v{vShare}
          s_cbranch_vccz K2_SL1_DONE
          v_cmp_gt_u32 s[{VM}:{VM+1}], 16, v{vE}
          v_lshlrev_b32 v{vt0}, 2, v{vE}
          v_add_u32 v{vt0}, s{sWB}, v{vt0}
          s_and_b64 exec, vcc, s[{VM}:{VM+1}]
          ds_write_b32 v{vt0}, v{vO} offset:{OFFP_OFF}
          s_mov_b64 exec, -1
          v_add_u32 v{vE}, 1, v{vE}
          v_add_u32 v{vO}, 96, v{vO}
          s_add_u32 s{t0}, s{t0}, 1
          s_branch K2_SL1
          K2_SL1_DONE:
          s_waitcnt lgkmcnt(0)
          ds_read_b32 v{VF}, v{vLrd}
          s_sub_i32 s{t0}, s{sNw}, s{sWb}
          s_max_i32 s{t0}, s{t0}, 0
          v_cmp_gt_u32 s[{VM}:{VM+1}], s{t0}, v{vRecQ}
          s_waitcnt lgkmcnt(0)
          v_add_u32 v{VF}, v{VF}, v{vq16}
          s_mov_b64 exec, s[{mQ012}:{mQ012+1}]
          buffer_load_dwordx4 v[{REC}:{REC+3}], v{VF}, s[{sREC}:{sREC+3}], 0 offen
          s_and_b64 exec, s[{VM}:{VM+1}], s[{mQ2}:{mQ2+1}]
          s_waitcnt vmcnt(0)
          v_and_b32 v{vt0}, 0x3c, v{REC+2}
          ds_add_rtn_u32 v{REC+3}, v{vt0}, v{vOne}
          s_waitcnt lgkmcnt(0)
          v_mul_u32_u24 v{vt0}, {WSZ//4}, v{vt0}
          v_mad_u32_u24 v{REC+3}, v{REC+3}, {RECB}, v{vt0}
          s_mov_b64 exec, s[{VM}:{VM+1}]
          s_nop 1
          v_add_u32_dpp v{VF}, v{REC+3}, v{vQ16B} quad_perm:[2,2,2,2] row_mask:0xf bank_mask:0xf
          ds_write_b128 v{VF}, v[{REC}:{REC+3}]
          s_mov_b64 exec, -1
          s_waitcnt lgkmcnt(0)
          s_barrier
          s_branch K2_AFTER
          K2_END:
          s_endpgm""")

K2_DESC="""
.amdhsa_kernel standalone__tensor_product_equiv_mace__graph_kernel
  .amdhsa_next_free_vgpr 168
  .amdhsa_next_free_sgpr 102
  .amdhsa_accum_offset 168
  .amdhsa_group_segment_fixed_size 0
  .amdhsa_kernarg_size 88
  .amdhsa_user_sgpr_count 2
  .amdhsa_user_sgpr_kernarg_segment_ptr 1
  .amdhsa_system_sgpr_workgroup_id_x 1
  .amdhsa_float_denorm_mode_32 3
.end_amdhsa_kernel
"""

HEADER=open('standalone__tensor_product_equiv_mace__graph.s.ref').read().split('; Override launch')[0]

def generate(opt):
    a=Asm()
    a.raw(HEADER.rstrip('\n'))
    a.raw(f"; @launch kernel=mace_prep_kernel grid=({NB},1,1) block=(640,1,1) lds={K1_LDS}")
    a.raw(f"; @launch kernel=standalone__tensor_product_equiv_mace__graph_kernel grid=({NB},1,1) block=(640,1,1) lds={K2_LDS}")
    a.raw('.amdgcn_target "amdgcn-amd-amdhsa--gfx950"')
    a.raw(".text")
    a.raw(".globl mace_prep_kernel")
    a.raw(".globl standalone__tensor_product_equiv_mace__graph_kernel")
    gen_k1(a,opt)
    gen_k2(a,opt)
    a.raw('.section .rodata,"a"')
    a.raw(".p2align 6")
    a.raw(K1_DESC.strip('\n'))
    a.raw(".p2align 6")
    a.raw(K2_DESC.strip('\n'))
    return a.text()

if __name__=="__main__":
    import json
    opt={}
    out="standalone__tensor_product_equiv_mace__graph.s"
    for arg in sys.argv[1:]:
        if arg.startswith("-o"): out=arg[2:]
        else:
            k,v=arg.split("=");
            try: v=json.loads(v)
            except Exception: pass
            opt[k]=v
    open(out,"w").write(generate(opt))
    print("wrote",out)
```

```python
import sys, json

N=10000; E=320000; NB=250; NPB=40; CH=1280; NW=8; NPW=5; NWG2=256
RECB=48
GREC=40
REC_OFF=0x0;        REC_SZ=E*GREC
TBL_OFF=0x1000000;  TBL_SZ=256*1024
KEY_OFF=0x1200000;  KEY_SZ=E*4
FRG_OFF=0x1100000;  WOF_SZ=32768; WRF_REL=WOF_SZ; CGF_REL=WOF_SZ+4096; FRG_SZ=WOF_SZ+4096+128
WS_USED=KEY_OFF+KEY_SZ
DIAG_OFF=0x1C00000
KN="standalone__tensor_product_equiv_mace__graph_kernel"

class Asm:
    def __init__(self): self.l=[]
    def __call__(self,s):
        for line in s.strip('\n').split('\n'):
            t=line.strip()
            if not t: continue
            self.l.append(t if t.endswith(':') else '    '+t)
    def raw(self,s): self.l.append(s)
    def text(self): return '\n'.join(self.l)+'\n'

def srd(a,r,lo,hi,size,off=0):
    if off:
        a(f"""s_add_u32 s{r}, s{lo}, {hex(off)}
              s_addc_u32 s{r+1}, s{hi}, 0""")
    else:
        a(f"""s_mov_b32 s{r}, s{lo}
              s_mov_b32 s{r+1}, s{hi}""")
    a(f"""s_mov_b32 s{r+2}, {hex(size)}
          s_mov_b32 s{r+3}, 0x00020000""")

def scan_incl(a,v):
    for m in ("row_shr:1 row_mask:0xf bank_mask:0xf bound_ctrl:0","row_shr:2 row_mask:0xf bank_mask:0xf bound_ctrl:0",
              "row_shr:4 row_mask:0xf bank_mask:0xf bound_ctrl:0","row_shr:8 row_mask:0xf bank_mask:0xf bound_ctrl:0",
              "row_bcast:15 row_mask:0xa bank_mask:0xf","row_bcast:31 row_mask:0xc bank_mask:0xf"):
        a(f"""s_nop 1
              v_add_u32_dpp v{v}, v{v}, v{v} {m}""")

K1_LDS=7168+CH*GREC+CH*4
def gen_k1(a, opt):
    STF=opt.get('k1_rec_flags','sc1')
    LDF=opt.get('k1_ld_flags','nt')
    CODEPF=opt.get('codepf',True)
    TBF=opt.get('k1_tb_flags','sc1')
    TH=opt.get('k1th',640)
    EPT=CH//TH; EAU=2*CH//TH; CPU=CH*GREC//16//TH
    assert CH%TH==0 and (CH*GREC//16)%TH==0
    BINS=0; STARTS=1024; BR=2048; STAGE=7168; KST=7168+CH*GREC
    TS=opt.get('ts',False)
    vT4,vT8,vT16,vL4,vOne=1,2,3,4,5
    DST=8; SRC=DST+EPT; SH=16;
    KEY=SH+2*EPT; BIN=KEY+EPT; RK=BIN+EPT; BA=RK+EPT; EA=((BA+EPT+3)//4)*4; BRV=EA+4*EAU; PS=BRV+EAU; TMP=PS+EAU
    NV=TMP+24
    vF0,vF1,vF2,vF3,vTs0,vTs1,vPf0,vPf1=NV,NV+1,NV+2,NV+3,NV+4,NV+5,NV+6,NV+7
    opt['_k1_vgpr']=NV+8
    DBG=opt.get('dbg',False)
    def ts(i):
        if DBG:
            a(f"""s_memrealtime s[64:65]
                  s_load_dwordx2 s[70:71], s[0:1], 72
                  s_waitcnt lgkmcnt(0)
                  v_mov_b32 v{vTs0}, s64
                  v_mov_b32 v{vTs1}, {4*i}
                  s_and_b32 s66, s2, 31
                  s_or_b32 s66, s66, s22
                  s_cmp_lg_u32 s66, 0
                  s_cbranch_scc1 DBG_{i}
                  s_mov_b64 s[64:65], exec
                  s_mov_b64 exec, 1
                  global_atomic_umax v{vTs1}, v{vTs0}, s[70:71]
                  v_not_b32 v{vTs0}, v{vTs0}
                  global_atomic_umax v{vTs1}, v{vTs0}, s[70:71] offset:32
                  s_mov_b64 exec, s[64:65]
                  DBG_{i}:""")
            return
        if not TS: return
        a(f"""s_memrealtime s[64:65]
              s_waitcnt lgkmcnt(0)
              v_mov_b32 v{vTs0}, s64
              s_lshl_b32 s66, s2, 4
              s_add_u32 s66, s66, s22
              s_lshl_b32 s66, s66, 6
              s_add_u32 s66, s66, {DIAG_OFF+4*i}
              v_mov_b32 v{vTs1}, s66
              s_mov_b64 s[64:65], exec
              s_mov_b64 exec, 1
              global_store_dword v{vTs1}, v{vTs0}, s[20:21]
              s_mov_b64 exec, s[64:65]""")
    sDST,sSRC,sSH,sEA,sWS,sFR=24,28,32,36,44,48
    a.raw(".p2align 8")
    a.raw(".type mace_prep_kernel,@function")
    a.raw("mace_prep_kernel:")
    a(f"""s_cmp_ge_u32 s2, {NB}
          s_cbranch_scc1 K1_END
          s_load_dwordx16 s[4:19], s[0:1], 0
          s_load_dwordx2 s[20:21], s[0:1], 80""")
    if CODEPF:
        a(f"""s_getpc_b64 s[68:69]
              K1_PC:
              v_lshlrev_b32 v{vPf0}, 7, v0
              v_cmp_gt_u32 vcc, 20, v0
              s_and_saveexec_b64 s[54:55], vcc
              global_load_dword v{vPf1}, v{vPf0}, s[68:69]
              s_mov_b64 exec, s[54:55]""")
    a(f"""v_lshlrev_b32 v{vT4}, 2, v0
          v_lshlrev_b32 v{vT8}, 3, v0
          v_lshlrev_b32 v{vT16}, 4, v0
          v_lshrrev_b32 v6, 6, v0
          v_and_b32 v{vL4}, 63, v0
          v_lshlrev_b32 v{vL4}, 2, v{vL4}
          v_readfirstlane_b32 s22, v6
          v_mov_b32 v{vOne}, 1
          v_mov_b32 v7, 0
          v_cmp_gt_u32 vcc, 0x100, v0
          s_and_saveexec_b64 s[54:55], vcc
          ds_write_b32 v{vT4}, v7
          s_mov_b64 exec, s[54:55]
          s_mul_i32 s23, s2, {CH}
          s_lshl_b32 s52, s23, 2
          s_lshl_b32 s53, s23, 3
          s_lshl_b32 s55, s23, 5
          s_waitcnt lgkmcnt(0)""")
    ts(0)
    srd(a,sDST,8,9,E*4); srd(a,sSRC,6,7,E*4); srd(a,sSH,10,11,E*8); srd(a,sEA,12,13,E*32)
    def off(o):
        return o if o<4096 else None
    def ld(kind,dst,vaddr,srd_,sbase,o):
        if o<4096:
            a(f"buffer_load_{kind} {dst}, v{vaddr}, s[{srd_}:{srd_+3}], s{sbase} offen offset:{o} {LDF}")
        else:
            a(f"""s_add_u32 s54, s{sbase}, {o}
                  buffer_load_{kind} {dst}, v{vaddr}, s[{srd_}:{srd_+3}], s54 offen {LDF}""")
    for i in range(EPT): ld("dword",f"v{DST+i}",vT4,sDST,52,i*TH*4)
    for i in range(EPT): ld("dword",f"v{SRC+i}",vT4,sSRC,52,i*TH*4)
    for i in range(EPT): ld("dwordx2",f"v[{SH+2*i}:{SH+2*i+1}]",vT8,sSH,53,i*TH*8)
    a("s_barrier")
    for i in range(EAU): ld("dwordx4",f"v[{EA+4*i}:{EA+4*i+3}]",vT16,sEA,55,i*TH*16)
    srd(a,sWS,20,21,WS_USED)
    a(f"""s_mov_b32 s67, 0
          s_cmp_ge_u32 s2, 37
          s_cbranch_scc1 K1_NOFR
          s_cmp_ge_u32 s22, 4
          s_cbranch_scc1 K1_NOFR
          s_mov_b32 s67, 1
          s_cmp_ge_u32 s2, 32
          s_cbranch_scc1 K1_FR2
          s_mov_b32 s{sFR}, s18
          s_mov_b32 s{sFR+1}, s19
          s_mov_b32 s{sFR+2}, 32768
          s_mov_b32 s{sFR+3}, 0x00020000
          v_lshrrev_b32 v{vF0}, 6, v0
          v_lshlrev_b32 v{vF0}, 10, v{vF0}
          v_and_b32 v{vF1}, 3, v0
          v_lshl_or_b32 v{vF0}, v{vF1}, 8, v{vF0}
          v_bfe_u32 v{vF1}, v0, 4, 2
          v_lshl_or_b32 v{vF0}, v{vF1}, 4, v{vF0}
          v_bfe_u32 v{vF1}, v0, 2, 2
          v_lshl_or_b32 v{vF0}, v{vF1}, 1, v{vF0}
          s_and_b32 s60, s2, 3
          s_lshl_b32 s60, s60, 12
          s_lshr_b32 s61, s2, 3
          s_lshl_b32 s61, s61, 6
          s_add_u32 s60, s60, s61
          s_bfe_u32 s61, s2, 0x10002
          s_lshl_b32 s61, s61, 3
          s_add_u32 s60, s60, s61
          v_add_u32 v{vF1}, 16384, v{vF0}
          s_lshl_b32 s62, s2, 10
          s_add_u32 s62, s62, {hex(FRG_OFF)}
          s_branch K1_FRLD
          K1_FR2:
          s_cmp_eq_u32 s2, 36
          s_cbranch_scc1 K1_FR3
          s_mov_b32 s{sFR}, s16
          s_mov_b32 s{sFR+1}, s17
          s_mov_b32 s{sFR+2}, 4096
          s_mov_b32 s{sFR+3}, 0x00020000
          v_lshrrev_b32 v{vF0}, 7, v0
          v_lshlrev_b32 v{vF0}, 11, v{vF0}
          v_and_b32 v{vF1}, 3, v0
          v_lshl_or_b32 v{vF0}, v{vF1}, 9, v{vF0}
          v_bfe_u32 v{vF1}, v0, 2, 5
          v_lshl_or_b32 v{vF0}, v{vF1}, 1, v{vF0}
          s_and_b32 s60, s2, 1
          s_lshl_b32 s60, s60, 6
          s_bfe_u32 s61, s2, 0x10001
          s_lshl_b32 s61, s61, 7
          s_add_u32 s60, s60, s61
          v_add_u32 v{vF1}, 256, v{vF0}
          s_sub_u32 s62, s2, 32
          s_lshl_b32 s62, s62, 10
          s_add_u32 s62, s62, {hex(FRG_OFF+WRF_REL)}
          s_branch K1_FRLD
          K1_FR3:
          s_mov_b32 s{sFR}, s14
          s_mov_b32 s{sFR+1}, s15
          s_mov_b32 s{sFR+2}, 128
          s_mov_b32 s{sFR+3}, 0x00020000
          v_lshrrev_b32 v{vF0}, 3, v0
          v_lshlrev_b32 v{vF0}, 5, v{vF0}
          v_and_b32 v{vF1}, 1, v0
          v_lshl_or_b32 v{vF0}, v{vF1}, 4, v{vF0}
          v_bfe_u32 v{vF1}, v0, 1, 2
          v_lshl_or_b32 v{vF0}, v{vF1}, 1, v{vF0}
          s_mov_b32 s60, 0
          v_add_u32 v{vF1}, 8, v{vF0}
          s_mov_b32 s62, {hex(FRG_OFF+CGF_REL)}
          K1_FRLD:
          buffer_load_ushort v{vF2}, v{vF0}, s[{sFR}:{sFR+3}], s60 offen
          buffer_load_ushort v{vF3}, v{vF1}, s[{sFR}:{sFR+3}], s60 offen
          K1_NOFR:""")
    if CODEPF:
        a(f"""s_cmp_lg_u32 s2, 40
              s_cbranch_scc1 K1_NOCPF
              s_cmp_lg_u32 s22, 0
              s_cbranch_scc1 K1_NOCPF
              s_add_u32 s68, s68, {KN}-K1_PC
              s_addc_u32 s69, s69, 0
              v_lshlrev_b32 v{vPf0}, 5, v{vL4}
              v_cmpx_gt_u32 vcc, K2_CODE_END-{KN}, v{vPf0}
              global_load_dword v{vPf1}, v{vPf0}, s[68:69]
              v_add_u32 v{vPf0}, 8192, v{vPf0}
              v_cmpx_gt_u32 vcc, K2_CODE_END-{KN}, v{vPf0}
              global_load_dword v{vPf1}, v{vPf0}, s[68:69]
              s_mov_b64 exec, -1
              K1_NOCPF:""")
    a(f"s_waitcnt vmcnt({2*EPT+EAU})")
    ts(1)
    for i in range(EPT):
        a(f"""v_mul_u32_u24 v{BIN+i}, 0xcccd, v{DST+i}
              v_lshrrev_b32 v{BIN+i}, 21, v{BIN+i}
              v_lshlrev_b32 v{BA+i}, 2, v{BIN+i}
              ds_add_rtn_u32 v{RK+i}, v{BA+i}, v{vOne}""")
    for i in range(EPT):
        a(f"""v_mul_u32_u24 v{KEY+i}, 40, v{BIN+i}
              v_sub_u32 v{KEY+i}, v{DST+i}, v{KEY+i}
              v_lshlrev_b32 v{KEY+i}, 2, v{KEY+i}
              v_or_b32 v{KEY+i}, 0x80000000, v{KEY+i}""")
    a(f"s_waitcnt vmcnt({EPT+EAU})")
    for i in range(EPT):
        a(f"v_lshl_or_b32 v{KEY+i}, v{SRC+i}, 10, v{KEY+i}")
    a("s_waitcnt lgkmcnt(0)")
    for i in range(EPT):
        a(f"""v_lshl_or_b32 v{TMP+i}, v{RK+i}, 8, v{BIN+i}
              ds_write_b32 v{vT4}, v{TMP+i} offset:{BR+i*TH*4}""")
    S0=TMP+8
    S0=((S0+3)//4)*4
    a(f"""s_waitcnt lgkmcnt(0)
          s_barrier
          s_cmp_lg_u32 s22, 0
          s_cbranch_scc1 K1_NOSCAN
          v_lshlrev_b32 v6, 2, v{vL4}
          ds_read_b128 v[{S0}:{S0+3}], v6 offset:{BINS}
          s_waitcnt lgkmcnt(0)
          v_add_u32 v{TMP}, v{S0}, v{S0+1}
          v_add_u32 v{TMP+1}, v{TMP}, v{S0+2}
          v_add_u32 v{TMP+2}, v{TMP+1}, v{S0+3}
          v_mov_b32 v{TMP+3}, v{TMP+2}""")
    scan_incl(a,TMP+3)
    Q=S0+4; R_=S0+8
    a(f"""v_sub_u32 v{Q}, v{TMP+3}, v{TMP+2}
          v_add_u32 v{Q+1}, v{Q}, v{S0}
          v_add_u32 v{Q+2}, v{Q}, v{TMP}
          v_add_u32 v{Q+3}, v{Q}, v{TMP+1}
          ds_write_b128 v6, v[{Q}:{Q+3}] offset:{STARTS}""")
    for i in range(4):
        a(f"""v_add_u32 v{R_+i}, s23, v{Q+i}
              v_lshl_or_b32 v{R_+i}, v{S0+i}, 19, v{R_+i}""")
    a(f"""s_lshl_b32 s60, s2, 10
          s_add_u32 s60, s60, {hex(TBL_OFF)}
          buffer_store_dwordx4 v[{R_}:{R_+3}], v6, s[{sWS}:{sWS+3}], s60 offen {TBF}
          s_waitcnt lgkmcnt(0)""")
    a.raw("K1_NOSCAN:")
    ts(2)
    a("s_barrier")
    for i in range(EPT): a(f"ds_read_b32 v{PS+i}, v{BA+i} offset:{STARTS}")
    a(f"""v_lshrrev_b32 v6, 1, v0
          v_lshlrev_b32 v6, 2, v6""")
    for i in range(EAU): a(f"ds_read_b32 v{BRV+i}, v6 offset:{BR+i*(TH//2)*4}")
    a(f"""s_mul_i32 s60, s23, {GREC}
          v_and_b32 v7, 1, v0
          v_lshlrev_b32 v7, 4, v7
          v_add_u32 v7, {STAGE}, v7
          s_waitcnt lgkmcnt({min(EAU,15)})""")
    for i in range(EPT):
        a(f"""v_add_u32 v{PS+i}, v{PS+i}, v{RK+i}
              v_lshlrev_b32 v{TMP+i}, 2, v{PS+i}
              v_add_u32 v{TMP+i}, {KST}, v{TMP+i}
              ds_write_b32 v{TMP+i}, v{KEY+i}
              v_mul_u32_u24 v{RK+i}, {GREC}, v{PS+i}""")
    a("s_waitcnt lgkmcnt(0)")
    for i in range(EAU):
        a(f"""v_and_b32 v{PS+i}, 0xff, v{BRV+i}
              v_lshlrev_b32 v{PS+i}, 2, v{PS+i}
              ds_read_b32 v{PS+i}, v{PS+i} offset:{STARTS}""")
    a(f"s_waitcnt vmcnt({EAU})")
    for i in range(EPT):
        a(f"ds_write_b64 v{RK+i}, v[{SH+2*i}:{SH+2*i+1}] offset:{STAGE+32}")
    for i in range(EAU):
        a(f"v_lshrrev_b32 v{BRV+i}, 8, v{BRV+i}")
    a(f"s_waitcnt lgkmcnt({EPT})")
    for i in range(EAU):
        a(f"""v_add_u32 v{PS+i}, v{PS+i}, v{BRV+i}
              v_mad_u32_u24 v{PS+i}, v{PS+i}, {GREC}, v7""")
    for i in range(EAU):
        a(f"""s_waitcnt vmcnt({EAU-1-i})
              ds_write2_b64 v{PS+i}, v[{EA+4*i}:{EA+4*i+1}], v[{EA+4*i+2}:{EA+4*i+3}] offset0:0 offset1:1""")
    CO=EA
    assert 4*(CPU+1)<=4*EAU+2*EAU+8, "copy regs"
    a(f"""s_waitcnt lgkmcnt(0)
          s_barrier
          v_add_u32 v6, {STAGE}, v{vT16}""")
    for i in range(CPU+1):
        a(f"ds_read_b128 v[{CO+4*i}:{CO+4*i+3}], v6 offset:{i*TH*16}")
    for i in range(CPU):
        a(f"""s_waitcnt lgkmcnt({CPU-i})
              buffer_store_dwordx4 v[{CO+4*i}:{CO+4*i+3}], v{vT16}, s[{sWS}:{sWS+3}], s60 offen {STF}
              s_add_u32 s60, s60, {TH*16}""")
    a(f"""s_mul_i32 s60, s23, 4
          s_add_u32 s60, s60, {hex(KEY_OFF)}
          v_cmp_gt_u32 vcc, 320, v0
          s_and_saveexec_b64 s[54:55], vcc
          s_waitcnt lgkmcnt(0)
          buffer_store_dwordx4 v[{CO+4*CPU}:{CO+4*CPU+3}], v{vT16}, s[{sWS}:{sWS+3}], s60 offen {STF}
          s_mov_b64 exec, s[54:55]""")
    ts(3)
    if TS or DBG:
        a("s_waitcnt vmcnt(0)"); ts(5)
    a(f"""s_cmp_eq_u32 s67, 0
          s_cbranch_scc1 K1_END
          s_waitcnt vmcnt({CPU+1})
          v_lshl_or_b32 v{vF2}, v{vF3}, 16, v{vF2}
          s_cmp_lg_u32 s2, 36
          s_cbranch_scc1 K1_FRST
          v_cmpx_gt_u32 vcc, 32, v0
          K1_FRST:
          buffer_store_dword v{vF2}, v{vT4}, s[{sWS}:{sWS+3}], s62 offen""")
    a.raw("K1_END:")
    a("s_endpgm")

CAPW=224
RING=8
RECL_SZ=(CAPW+1)*RECB
OFFP_OFF=RECL_SZ
BINS_OFF=OFFP_OFF+1152
RING_OFF=BINS_OFF+256
WSZ=RING_OFF+RING*1024
NODECNT=64; MAPL=224; INVL=384; HDR=544
K2_LDS=HDR+NW*WSZ
assert WSZ%16==0 and RING_OFF%16==0 and HDR%16==0 and K2_LDS<=163840

def gen_k2(a, opt):
    U=opt.get('U',8)
    USEPK=opt.get('pk',True)
    BSH=opt.get('bucket_shift',18)
    TS=opt.get('ts',False)
    RECF=opt.get('rec_ld_flags','')
    OUTF=opt.get('out_flags','nt')
    XF=opt.get('x_flags','')
    PF=opt.get('pf',True); CODEPF=opt.get('codepf',True); NPF2=opt.get('pf2',0)
    BAL=opt.get('bal',True); XCDMAP=opt.get('xcdmap',True)
    sB=3
    sXT,sREC,sTB,sFRG,sOUT=12,16,20,24,28
    sRing=38
    mQ012,mQ2,mW0,mW1,mW3,mH0,mH1=40,42,44,46,48,50,52
    sW,sWB,sN,sNw,sMode,sWb,sRounds,sSH=54,55,56,57,58,59,60,61
    t0,t1,t2,t3,t4,t5=62,63,64,65,66,67
    sRem=68; sCAP=69
    KR=70; NKR=16
    VM=86
    vLane,vL16,vOne,vO,vOn,vE,vS=1,2,3,4,5,6,7
    B1e,B2e,B1o,B2o=8,12,16,20
    P=[24,26,28,30]
    ACC=32; RWE=72; RWO=88; T=104; XP=120; A=128
    vEad,vSad,vOad,vKH,vt0,vt1,vL4,vSwz,vTr1,vTr2=130,131,132,133,134,135,136,137,138,139
    R1,R2=140,144; S=[148,150,152,154]
    vPre,vA0,vQ16B,vShare,vLrd,vq16,vTB=156,157,158,159,160,161,162
    WOFR=164
    REC=192; NIT=16
    VF=T
    assert U<=8

    DBG2=opt.get('dbg2',False)
    def ts(i,cyc=False):
        if DBG2:
            m={7:0,8:1,2:2,3:3,15:4,5:5,6:6}
            if i not in m or cyc: return
            j=m[i]
            a(f"""s_memrealtime s[32:33]
                  s_load_dwordx2 s[34:35], s[0:1], 72
                  s_waitcnt lgkmcnt(0)
                  v_mov_b32 v{vt0}, s32
                  v_mov_b32 v{vt1}, {4*j}
                  s_and_b32 s36, s2, 31
                  s_or_b32 s36, s36, s{sW}
                  s_cmp_lg_u32 s36, 0
                  s_cbranch_scc1 DBG2_{i}
                  s_mov_b64 s[32:33], exec
                  s_mov_b64 exec, 1
                  global_atomic_umax v{vt1}, v{vt0}, s[34:35]
                  v_not_b32 v{vt0}, v{vt0}
                  global_atomic_umax v{vt1}, v{vt0}, s[34:35] offset:32
                  s_mov_b64 exec, s[32:33]
                  DBG2_{i}:""")
            return
        if not TS: return
        a(f"""{'s_memtime' if cyc else 's_memrealtime'} s[32:33]
              s_waitcnt lgkmcnt(0)
              v_mov_b32 v{vt0}, s32
              s_lshl_b32 s34, s{sB}, 4
              s_add_u32 s34, s34, s{sW}
              s_lshl_b32 s34, s34, 6
              s_add_u32 s34, s34, {DIAG_OFF+0x40000+4*i}
              v_mov_b32 v{vt1}, s34
              s_mov_b64 s[32:33], exec
              s_mov_b64 exec, 1
              global_store_dword v{vt1}, v{vt0}, s[10:11]
              s_mov_b64 exec, s[32:33]""")

    a.raw(".p2align 8")
    a.raw(f".type {KN},@function")
    a.raw(f"{KN}:")
    a(f"""s_cmp_ge_u32 s2, {NWG2}
          s_cbranch_scc1 K2_END
          s_load_dwordx2 s[4:5], s[0:1], 0
          s_load_dwordx2 s[8:9], s[0:1], 64
          s_load_dwordx2 s[10:11], s[0:1], 80
          s_getpc_b64 s[6:7]
          K2_PC:""")
    a(f"""s_and_b32 s{t1}, s2, 7
          s_lshr_b32 s{t0}, s2, 3
          s_mul_i32 s{sB}, s{t1}, 31
          s_min_u32 s{t2}, s{t1}, 2
          s_add_u32 s{sB}, s{sB}, s{t2}
          s_add_u32 s{sB}, s{sB}, s{t0}
          s_add_u32 s{t3}, s{t1}, {NB-2}
          s_cmp_eq_u32 s{t0}, 31
          s_cselect_b32 s{t4}, s{t2}, 0
          s_cmp_eq_u32 s{t4}, 2
          s_cselect_b32 s{sB}, s{t3}, s{sB}""")
    a(f"""v_and_b32 v{vLane}, 63, v0
          v_lshrrev_b32 v{vt0}, 6, v0
          v_lshlrev_b32 v{vL16}, 4, v{vLane}
          v_readfirstlane_b32 s{sW}, v{vt0}
          v_lshlrev_b32 v{vL4}, 2, v{vLane}
          v_lshrrev_b32 v{vt0}, 1, v{vLane}
          v_lshlrev_b32 v{vt0}, 10, v{vt0}
          s_cmp_ge_u32 s{sB}, {NB}
          s_cbranch_scc1 K2_PF
          s_lshl_b32 s{t0}, s{sB}, 2
          s_lshl_b32 s{t1}, s{sW}, 15
          s_add_u32 s{t0}, s{t0}, s{t1}
          s_lshl_b32 s{t1}, s{sW}, 6
          s_sub_u32 s{t1}, {2*NB}, s{t1}
          v_mov_b32 v{vTB}, 0
          v_and_b32 v{vt1}, 3, v{vLane}
          v_lshlrev_b32 v{vt1}, 5, v{vt1}
          s_waitcnt lgkmcnt(0)""")
    srd(a,sTB,10,11,TBL_SZ,TBL_OFF)
    a(f"""v_cmpx_gt_u32 vcc, s{t1}, v{vLane}
          buffer_load_dword v{vTB}, v{vt0}, s[{sTB}:{sTB+3}], s{t0} offen
          s_mov_b64 exec, -1""")
    srd(a,sFRG,10,11,FRG_SZ,FRG_OFF)
    a(f"s_mov_b32 s{t0}, {WRF_REL}")
    for f in range(4):
        a(f"buffer_load_dwordx4 v[{B1e+4*f}:{B1e+4*f+3}], v{vL16}, s[{sFRG}:{sFRG+3}], s{t0} offen offset:{1024*f}")
    a(f"""s_mov_b32 s{t1}, {CGF_REL}
          buffer_load_dwordx4 v[24:27], v{vt1}, s[{sFRG}:{sFRG+3}], s{t1} offen
          buffer_load_dwordx4 v[28:31], v{vt1}, s[{sFRG}:{sFRG+3}], s{t1} offen offset:16""")
    if CODEPF:
        a(f"""s_cmp_lg_u32 s{sW}, 7
              s_cbranch_scc1 K2_NOCPF
              s_sub_u32 s6, s6, K2_PC-{KN}
              s_subb_u32 s7, s7, 0
              v_lshlrev_b32 v{vE}, 7, v{vLane}
              v_cmpx_gt_u32 vcc, K2_CODE_END-{KN}, v{vE}
              global_load_dword v0, v{vE}, s[6:7]
              v_add_u32 v{vE}, 8192, v{vE}
              v_cmpx_gt_u32 vcc, K2_CODE_END-{KN}, v{vE}
              global_load_dword v0, v{vE}, s[6:7]
              s_mov_b64 exec, -1
              K2_NOCPF:""")
    srd(a,sREC,10,11,REC_SZ,REC_OFF)
    srd(a,sTB,10,11,KEY_SZ,KEY_OFF)
    srd(a,sXT,4,5,N*1024)
    srd(a,sOUT,8,9,N*1024)
    ts(7)
    a(f"""v_mov_b32 v{vOne}, 1
          s_mov_b32 s{mQ012}, 0x77777777
          s_mov_b32 s{mQ012+1}, 0x77777777
          s_mov_b32 s{mQ2}, 0x44444444
          s_mov_b32 s{mQ2+1}, 0x44444444
          s_mov_b32 s{mW0}, 0x11111111
          s_mov_b32 s{mW0+1}, 0x11111111
          s_mov_b32 s{mW1}, 0x22222222
          s_mov_b32 s{mW1+1}, 0x22222222
          s_mov_b32 s{mW3}, 0x88888888
          s_mov_b32 s{mW3+1}, 0x88888888
          s_mov_b32 s{mH0}, 0x0f0f0f0f
          s_mov_b32 s{mH0+1}, 0x0f0f0f0f
          s_mov_b32 s{mH1}, 0xf0f0f0f0
          s_mov_b32 s{mH1+1}, 0xf0f0f0f0
          s_mul_i32 s{sWB}, s{sW}, {WSZ}
          s_add_u32 s{sWB}, s{sWB}, {HDR}
          s_add_u32 s{sSH}, s{sWB}, 32
          s_add_u32 s{sRing}, s{sWB}, {RING_OFF}
          s_mov_b32 s{sCAP}, {CAPW}
          s_mov_b32 s{sMode}, 0
          v_and_b32 v{vt0}, 3, v{vLane}
          v_lshrrev_b32 v{vt1}, 2, v{vLane}
          v_lshlrev_b32 v{vq16}, 4, v{vt0}
          v_add_u32 v{vQ16B}, {HDR}, v{vq16}
          v_lshlrev_b32 v{vLrd}, 2, v{vt1}
          v_add_u32 v{vLrd}, s{sWB}, v{vLrd}
          v_add_u32 v{vLrd}, {OFFP_OFF}, v{vLrd}""")
    a(f"""v_mov_b32 v{vt1}, 0
          s_cmp_lg_u32 s{sW}, 0
          s_cbranch_scc1 K2_NOCNT
          v_cmpx_gt_u32 vcc, 56, v{vLane}
          ds_write_b32 v{vL4}, v{vt1}
          s_mov_b64 exec, -1
          K2_NOCNT:
          v_add_u32 v{vt0}, s{sWB}, v{vL4}
          v_mov_b32 v{vE}, 0xffffff
          ds_write_b32 v{vt0}, v{vt1} offset:{BINS_OFF}
          ds_write_b32 v{vt0}, v{vE} offset:{OFFP_OFF}
          ds_write_b32 v{vt0}, v{vE} offset:{OFFP_OFF+256}
          ds_write_b32 v{vt0}, v{vE} offset:{OFFP_OFF+512}
          ds_write_b32 v{vt0}, v{vE} offset:{OFFP_OFF+768}""")
    ts(0)
    a(f"""v_and_b32 v{vt1}, 1, v{vLane}
          s_waitcnt vmcnt(6)""")
    ts(8)
    a(f"""v_and_b32 v{vt1}, 1, v{vLane}
          v_lshrrev_b32 v{vShare}, 19, v{vTB}
          v_and_b32 v{vA0}, 0x7ffff, v{vTB}
          v_add_u32 v{vA0}, v{vA0}, v{vt1}
          v_xor_b32 v{vt1}, 1, v{vt1}
          v_add_u32 v{vShare}, v{vShare}, v{vt1}
          v_lshrrev_b32 v{vShare}, 1, v{vShare}
          v_mov_b32 v{vPre}, v{vShare}""")
    scan_incl(a,vPre)
    a(f"""s_nop 0
          v_readlane_b32 s{sNw}, v{vPre}, 63
          v_sub_u32 v{vPre}, v{vPre}, v{vShare}
          s_nop 1
          s_cmp_le_u32 s{sNw}, {16*NIT}
          s_cbranch_scc1 K2_LISTN
          s_mov_b32 s{sNw}, 0
          s_mov_b32 s{sMode}, 2
          K2_LISTN:
          v_lshlrev_b32 v{vE}, 2, v{vPre}
          v_add_u32 v{vE}, s{sWB}, v{vE}
          v_mov_b32 v{vS}, v{vShare}
          v_mov_b32 v{vO}, v{vA0}
          s_cmp_eq_u32 s{sMode}, 2
          s_cbranch_scc1 K2_L1_DONE
          K2_L1:
          v_cmpx_lt_u32 vcc, 0, v{vS}
          ds_write_b32 v{vE}, v{vO} offset:{OFFP_OFF}
          v_add_u32 v{vt0}, 2, v{vO}
          v_cmpx_lt_u32 vcc, 1, v{vS}
          ds_write_b32 v{vE}, v{vt0} offset:{OFFP_OFF+4}
          v_add_u32 v{vt1}, 4, v{vO}
          v_cmpx_lt_u32 vcc, 2, v{vS}
          ds_write_b32 v{vE}, v{vt1} offset:{OFFP_OFF+8}
          v_add_u32 v{vt0}, 6, v{vO}
          v_cmpx_lt_u32 vcc, 3, v{vS}
          ds_write_b32 v{vE}, v{vt0} offset:{OFFP_OFF+12}
          v_subrev_u32 v{vS}, 4, v{vS}
          v_add_u32 v{vO}, 8, v{vO}
          v_add_u32 v{vE}, 16, v{vE}
          s_cbranch_execnz K2_L1
          s_mov_b64 exec, -1
          K2_L1_DONE:
          s_waitcnt lgkmcnt(0)""")
    CA=[RWE+i for i in range(4)]; CK=[RWE+4+i for i in range(4)]; CM=[RWE+8+i for i in range(4)]; CP=[RWE+12+i for i in range(4)]
    a(f"""v_add_u32 v{vt0}, s{sWB}, v{vL4}""")
    for c in range(4):
        a(f"ds_read_b32 v{CA[c]}, v{vt0} offset:{OFFP_OFF+256*c}")
    for it in range(NIT):
        a(f"ds_read_b32 v{VF+it}, v{vLrd} offset:{64*it}")
    a(f"s_waitcnt lgkmcnt({NIT if NIT<=15 else 15})")
    if not opt.get('tsepi'): ts(9)
    for c in range(4):
        a(f"""v_lshlrev_b32 v{CA[c]}, 2, v{CA[c]}
              buffer_load_dword v{CK[c]}, v{CA[c]}, s[{sTB}:{sTB+3}], 0 offen""")
    a("s_waitcnt lgkmcnt(0)")
    FIRSTCHK=9
    def chk(it,label):
        if it>=FIRSTCHK:
            a(f"""s_cmp_le_u32 s{sNw}, {16*it}
                  s_cbranch_scc1 {label}""")
    def payload(lo,hi,label=None):
        a(f"s_mov_b64 exec, s[{mQ012}:{mQ012+1}]")
        for it in range(lo,hi):
            if label: chk(it,label)
            a(f"""v_mad_u32_u24 v{VF+it}, v{VF+it}, {GREC}, v{vq16}
                  buffer_load_dwordx4 v[{REC+4*it}:{REC+4*it+3}], v{VF+it}, s[{sREC}:{sREC+3}], 0 offen {RECF}""")
        if label: a(f"{label}:")
        a("s_mov_b64 exec, -1")
    G=opt.get('pgrp',3)
    payload(0,G)
    if not opt.get('tsepi'): ts(1)
    for i in range(8*NPW): a(f"v_mov_b32 v{ACC+i}, 0")
    for i in range(R1,R1+16): a(f"v_mov_b32 v{i}, 0")
    a(f"""v_lshrrev_b32 v{vKH}, 5, v{vLane}
          v_lshlrev_b32 v{vKH}, 4, v{vKH}
          v_add_u32 v{vKH}, s{sWB}, v{vKH}
          v_lshrrev_b32 v{vt0}, 4, v{vLane}
          v_and_b32 v{vt1}, 15, v{vLane}
          v_lshlrev_b32 v{vSwz}, 2, v{vt0}
          v_sub_u32 v{vSwz}, v{vt1}, v{vSwz}
          v_and_b32 v{vSwz}, 15, v{vSwz}
          v_lshlrev_b32 v{vSwz}, 4, v{vSwz}
          v_lshl_add_u32 v{vSwz}, v{vt0}, 8, v{vSwz}
          v_bfe_u32 v{vE}, v{vLane}, 2, 2
          v_bfe_u32 v{vS}, v{vLane}, 1, 1
          v_lshl_add_u32 v{vS}, v{vt0}, 1, v{vS}
          v_lshl_add_u32 v{vS}, v{vE}, 2, v{vS}
          v_and_b32 v{vTr1}, 15, v{vS}
          v_add_u32 v{vTr2}, 8, v{vS}
          v_and_b32 v{vTr2}, 15, v{vTr2}
          v_and_b32 v{vS}, 1, v{vLane}
          v_lshlrev_b32 v{vS}, 3, v{vS}
          v_lshl_add_u32 v{vS}, v{vE}, 8, v{vS}
          v_add_u32 v{vS}, s{sRing}, v{vS}
          v_lshl_add_u32 v{vTr1}, v{vTr1}, 4, v{vS}
          v_lshl_add_u32 v{vTr2}, v{vTr2}, 4, v{vS}
          s_mov_b32 s{t3}, 0x80fffc00
          s_waitcnt vmcnt({G})
          s_barrier""")
    if not opt.get('tsepi'): ts(2)
    NPFE=opt.get('pf2e',0)
    if NPFE:
        a(f"""s_lshr_b32 s{t0}, s2, 3
              s_lshl_b32 s{t0}, s{t0}, 3
              s_add_u32 s{t0}, s{t0}, s{sW}
              s_lshl_b32 s{t0}, s{t0}, 13
              v_lshlrev_b32 v{vE}, 7, v{vLane}""")
        for i in range(NPFE):
            a(f"""buffer_load_dword v0, v{vE}, s[{sXT}:{sXT+3}], s{t0} offen
                  s_add_u32 s{t0}, s{t0}, {256*8192}""")
    a(f"""s_cmp_lg_u32 s{sMode}, 2
          s_cbranch_scc1 K2_NOFLAG
          v_mov_b32 v{vt0}, 48
          v_mov_b32 v{vt1}, 0xffff
          ds_write_b32 v{vt0}, v{vt1}
          K2_NOFLAG:""")
    for c in range(4):
        a(f"""v_cmpx_gt_i32 vcc, 0, v{CK[c]}
              v_and_b32 v{CM[c]}, 0xfc, v{CK[c]}
              ds_add_u32 v{CM[c]}, v{vOne} offset:{NODECNT}
              s_mov_b64 exec, -1""")
    payload(G,2*G)
    a(f"""s_waitcnt lgkmcnt(0)
          s_barrier""")
    ts(10)
    a(f"""s_cmp_eq_u32 s{sW}, 0
          s_cbranch_scc1 K2_MAP""")
    payload(2*G,NIT,"K2_LD_DONE")
    a(f"""s_branch K2_MAP_DONE
          K2_MAP:
          v_cmpx_gt_u32 vcc, {NPB}, v{vLane}
          ds_read_b32 v{vE}, v{vL4} offset:{NODECNT}
          s_add_u32 s{t2}, s{sWB}, {BINS_OFF}
          s_waitcnt lgkmcnt(0)
          v_min_u32 v{vE}, 63, v{vE}
          v_lshl_add_u32 v{vE}, v{vE}, 2, s{t2}
          ds_add_rtn_u32 v{vS}, v{vE}, v{vOne}
          s_mov_b64 exec, -1
          v_add_u32 v{vt0}, s{t2}, v{vL4}
          ds_read_b32 v{vO}, v{vt0}
          s_waitcnt lgkmcnt(0)
          v_mov_b32 v{vOn}, v{vO}""")
    scan_incl(a,vOn)
    a(f"""v_sub_u32 v{vOn}, v{vOn}, v{vO}
          ds_write_b32 v{vt0}, v{vOn}
          v_cmpx_gt_u32 vcc, {NPB}, v{vLane}
          ds_read_b32 v{vO}, v{vE}
          s_waitcnt lgkmcnt(0)
          v_add_u32 v{vO}, v{vO}, v{vS}
          v_lshrrev_b32 v{vS}, 3, v{vO}
          v_and_b32 v{vE}, 7, v{vO}
          v_and_b32 v{vt1}, 1, v{vS}
          v_mul_u32_u24 v{vt1}, 7, v{vt1}
          v_xor_b32 v{vE}, v{vE}, v{vt1}
          v_lshlrev_b32 v{vO}, 5, v{vS}
          v_lshl_or_b32 v{vO}, v{vE}, 2, v{vO}
          ds_write_b32 v{vL4}, v{vO} offset:{MAPL}
          v_mul_u32_u24 v{vE}, 5, v{vE}
          v_add_u32 v{vE}, v{vE}, v{vS}
          v_lshlrev_b32 v{vE}, 2, v{vE}
          v_lshlrev_b32 v{vO}, 10, v{vLane}
          ds_write_b32 v{vE}, v{vO} offset:{INVL}
          s_mov_b64 exec, -1
          v_mov_b32 v{vO}, 0
          ds_write_b32 v{vt0}, v{vO}
          s_waitcnt lgkmcnt(0)
          K2_MAP_DONE:
          s_barrier
          s_cmp_lg_u32 s{sW}, 0
          s_cbranch_scc1 K2_PL0_DONE""")
    payload(2*G,NIT,"K2_LD_DONE0")
    a("K2_PL0_DONE:")
    ts(11)
    a(f"v_and_b32 v{vt0}, 0xfc, v{CK[0]}") if False else None
    for c in range(4):
        a(f"""v_and_b32 v{CM[c]}, 0xfc, v{CK[c]}
              ds_read_b32 v{CM[c]}, v{CM[c]} offset:{MAPL}""")
    a(f"""s_add_u32 s{t2}, s{sWB}, {CAPW*RECB}
          v_mov_b32 v{vE}, s{t2}
          v_add_u32 v{vS}, s{sRing}, v{vL4}
          s_movk_i32 s{t4}, {HDR}
          s_mov_b32 s{t5}, {HDR+RING_OFF}
          s_waitcnt lgkmcnt(0)""")
    for c in range(4):
        a(f"""v_and_or_b32 v{CK[c]}, v{CK[c]}, s{t3}, v{CM[c]}
              v_and_b32 v{CM[c]}, 0x1c, v{CM[c]}
              v_cmpx_gt_i32 vcc, 0, v{CK[c]}
              ds_add_rtn_u32 v{CP[c]}, v{CM[c]}, v{vOne}
              s_mov_b64 exec, -1""")
    for c in range(4):
        a(f"v_mul_u32_u24 v{CM[c]}, {WSZ//4}, v{CM[c]}")
    a("s_waitcnt lgkmcnt(0)")
    for c in range(4):
        a(f"""v_cmp_gt_i32 vcc, 0, v{CK[c]}
              v_min_u32 v{CP[c]}, s{sCAP}, v{CP[c]}
              v_lshl_add_u32 v{vt1}, v{CP[c]}, 2, v{CM[c]}
              v_mad_u32_u24 v{vt0}, v{CP[c]}, {RECB}, v{CM[c]}
              v_add_u32 v{vt1}, s{t5}, v{vt1}
              v_add_u32 v{vt0}, s{t4}, v{vt0}
              v_cndmask_b32 v{vt0}, v{vE}, v{vt0}, vcc
              ds_write_b32 v{vS}, v{vt0} offset:{1024+256*c}
              s_mov_b64 exec, vcc
              ds_write_b32 v{vt1}, v{CK[c]}
              s_mov_b64 exec, -1""")
    a(f"""s_waitcnt lgkmcnt(0)
          s_barrier""")
    ts(3)
    a(f"""K2_AFTER:
          v_and_b32 v{vt0}, 63, v{vL4}
          ds_read_b32 v{vt1}, v{vt0}
          v_add_u32 v{vt0}, s{sWB}, v{vL4}
          v_add_u32 v{vE}, s{sRing}, v{vL4}""")
    NS=4
    KEY=[RWE+i for i in range(4)]; BA=[RWE+4+i for i in range(4)]; RK=[RWE+8+i for i in range(4)]; ST=[RWE+12+i for i in range(4)]; VAL=[RWO+i for i in range(4)]
    SM=VM
    for i in range(NS):
        a(f"ds_read_b32 v{KEY[i]}, v{vE} offset:{256*i}")
    a(f"v_mov_b32 v{vS}, 0")
    for i in range(4):
        a(f"ds_write_b32 v{vt0}, v{vS} offset:{OFFP_OFF+256*i}")
    a(f"""v_cmpx_gt_u32 vcc, 32, v{vLane}
          ds_write_b32 v{vt0}, v{vS} offset:{OFFP_OFF+1024}
          s_mov_b64 exec, -1
          s_add_u32 s{t2}, s{sWB}, {BINS_OFF}
          s_waitcnt lgkmcnt(5)
          v_readlane_b32 s{sN}, v{vt1}, s{sW}
          s_cmp_eq_u32 s{sMode}, 1
          s_cbranch_scc1 K2_SORT
          v_cmp_lt_u32 vcc, s{sCAP}, v{vt1}
          s_cbranch_vccnz K2_SLOW_INIT
          K2_SORT:""")
    for i in range(NS):
        a(f"""s_sub_i32 s{t0}, s{sN}, {64*i}
              s_max_i32 s{t0}, s{t0}, 0
              v_cmp_gt_u32 s[{SM+2*i}:{SM+2*i+1}], s{t0}, v{vLane}
              v_bfe_u32 v{BA[i]}, v{KEY[i]}, {BSH}, {24-BSH}
              v_lshl_add_u32 v{BA[i]}, v{BA[i]}, 2, s{t2}""")
    for i in range(NS):
        a(f"""s_mov_b64 exec, s[{SM+2*i}:{SM+2*i+1}]
              ds_add_rtn_u32 v{RK[i]}, v{BA[i]}, v{vOne}""")
    a(f"""s_mov_b64 exec, -1
          ds_read_b32 v{vS}, v{vt0} offset:{BINS_OFF}
          s_mov_b32 s{t3}, 0xfffc38""")
    for i in range(NS):
        a(f"""v_and_b32 v{VAL[i]}, 0xfffc00, v{KEY[i]}
              v_lshrrev_b32 v{vt1}, 2, v{KEY[i]}
              v_and_or_b32 v{VAL[i]}, v{vt1}, 56, v{VAL[i]}
              v_add_u32 v{vt1}, {64*i}, v{vLane}
              v_lshl_or_b32 v{VAL[i]}, v{vt1}, 24, v{VAL[i]}""")
    a(f"""s_waitcnt lgkmcnt(0)
          v_mov_b32 v{vO}, v{vS}""")
    scan_incl(a,vO)
    a(f"""v_sub_u32 v{vO}, v{vO}, v{vS}
          ds_write_b32 v{vt0}, v{vO} offset:{BINS_OFF}""")
    for i in range(NS):
        a(f"ds_read_b32 v{ST[i]}, v{BA[i]}")
    a(f"""s_add_u32 s{t2}, s{sWB}, {OFFP_OFF}
          v_and_b32 v{vt0}, 31, v{vLane}
          v_lshlrev_b32 v{vOad}, 2, v{vt0}
          v_add_u32 v{vOad}, s{t2}, v{vOad}
          v_lshrrev_b32 v{vt1}, 3, v{vt0}
          v_lshlrev_b32 v{vt1}, 2, v{vt1}
          v_and_or_b32 v{vt1}, v{vt0}, 3, v{vt1}
          v_lshlrev_b32 v{vEad}, 2, v{vt1}
          v_add_u32 v{vEad}, s{t2}, v{vEad}
          v_lshrrev_b32 v{vt0}, 2, v{vLane}
          v_lshlrev_b32 v{vSad}, 2, v{vt0}
          v_add_u32 v{vSad}, s{t2}, v{vSad}
          s_waitcnt lgkmcnt(0)""")
    for i in range(NS):
        a(f"""v_add_u32 v{ST[i]}, v{ST[i]}, v{RK[i]}
              v_lshl_add_u32 v{ST[i]}, v{ST[i]}, 2, s{t2}
              s_mov_b64 exec, s[{SM+2*i}:{SM+2*i+1}]
              ds_write_b32 v{ST[i]}, v{VAL[i]}
              s_mov_b64 exec, -1""")
    BAD=[196+i for i in range(5)]; OAD=[201+i for i in range(5)]
    def epi_addr():
        e_,s_,o_,on_,u0,u1=T,T+1,T+2,T+3,T+4,T+5
        a(f"""v_and_b32 v{u1}, 15, v{vLane}
              v_lshrrev_b32 v{e_}, 4, v{vLane}
              s_lshr_b32 s{t0}, s{sW}, 2
              s_mul_i32 s{t0}, s{t0}, 80
              v_add_u32 v{s_}, s{t0}, v{u1}
              s_movk_i32 s{t5}, 272
              v_lshlrev_b32 v{o_}, 4, v{e_}
              v_add_u32 v{on_}, {HDR}, v{o_}""")
        for i in range(5):
            a(f"""v_add_u32 v{u0}, {16*i}, v{s_}
                  v_and_b32 v{u1}, 0xfc, v{u0}
                  ds_read_b32 v{OAD[i]}, v{u1} offset:{INVL}
                  v_mul_u32_u24 v{u1}, 3277, v{u0}
                  v_lshrrev_b32 v{u1}, 16, v{u1}
                  v_mul_u32_u24 v{u1}, {WSZ-20*272}, v{u1}
                  v_mad_u32_u24 v{BAD[i]}, v{u0}, s{t5}, v{u1}
                  v_add_u32 v{BAD[i]}, v{BAD[i]}, v{on_}""")
        a(f"""v_and_b32 v{u0}, 3, v{vLane}
              v_lshl_add_u32 v{o_}, v{u0}, 8, v{o_}
              s_waitcnt lgkmcnt(0)""")
        for i in range(5):
            a(f"v_add_u32 v{OAD[i]}, v{OAD[i]}, v{o_}")
    ts(4)
    a(f"""s_cmp_eq_u32 s{sMode}, 1
          s_cbranch_scc1 K2_MAIN_SETUP
          v_lshrrev_b32 v{vt0}, 2, v{vLane}
          v_lshlrev_b32 v{vt0}, 2, v{vt0}
          v_add_u32 v{vt0}, s{sRing}, v{vt0}""")
    for it in range(NIT):
        a(f"ds_read_b32 v{VF+it}, v{vt0} offset:{1024+64*it}")
    if NPF2:
        a(f"""s_lshr_b32 s{t0}, s2, 3
              s_lshl_b32 s{t0}, s{t0}, 3
              s_add_u32 s{t0}, s{t0}, s{sW}
              s_lshl_b32 s{t0}, s{t0}, 13
              v_lshlrev_b32 v{vE}, 7, v{vLane}""")
        for i in range(NPF2):
            a(f"""buffer_load_dword v0, v{vE}, s[{sXT}:{sXT+3}], s{t0} offen
                  s_add_u32 s{t0}, s{t0}, {256*8192}""")
    a(f"""s_mov_b64 exec, s[{mQ012}:{mQ012+1}]
          s_waitcnt vmcnt({NPF2}) lgkmcnt(0)""")
    ts(14)
    for it in range(NIT):
        chk(it,"K2_P2_DONE")
        r=REC+4*it
        a(f"""v_add_u32 v{VF+it}, v{VF+it}, v{vq16}
              ds_write_b128 v{VF+it}, v[{r}:{r+3}]""")
    a(f"""K2_P2_DONE:
          s_mov_b64 exec, -1
          s_and_b32 s{t0}, s{sW}, 3
          s_lshl_b32 s{t0}, s{t0}, 13
          s_add_u32 s{t1}, s{t0}, 4096
          s_waitcnt lgkmcnt(0)""")
    for i in range(4):
        a(f"buffer_load_dwordx4 v[{WOFR+4*i}:{WOFR+4*i+3}], v{vL16}, s[{sFRG}:{sFRG+3}], s{t0} offen offset:{1024*i}")
    for i in range(4):
        a(f"buffer_load_dwordx4 v[{WOFR+16+4*i}:{WOFR+16+4*i+3}], v{vL16}, s[{sFRG}:{sFRG+3}], s{t1} offen offset:{1024*i}")
    a("""s_barrier
         K2_MAIN_SETUP:""")
    ts(15)
    ts(12,True)
    a(f"""s_cmp_eq_u32 s{sN}, 0
          s_cbranch_scc1 K2_EMPTY
          ds_read_b32 v{vO}, v{vOad}
          ds_read_b32 v{vE}, v{vEad}
          ds_read_b32 v{vS}, v{vSad}
          s_mov_b32 s{sRem}, s{sN}
          s_mov_b32 s{t3}, 0xfffc00
          s_waitcnt lgkmcnt(0)""")
    def operand_reads():
        a(f"""v_lshrrev_b32 v{vt0}, 24, v{vE}
              v_lshrrev_b32 v{vt1}, 24, v{vS}
              v_mad_u32_u24 v{vt0}, v{vt0}, {RECB}, v{vKH}
              v_mad_u32_u24 v{vt1}, v{vt1}, {RECB}, s{sSH}
              s_mov_b64 exec, s[{mH0}:{mH0+1}]
              ds_read_b128 v[{R1}:{R1+3}], v{vt0}
              s_mov_b64 exec, s[{mH1}:{mH1+1}]
              ds_read_b128 v[{R2}:{R2+3}], v{vt0}
              s_mov_b64 exec, s[{mW0}:{mW0+1}]
              ds_read_b64 v[{S[0]}:{S[0]+1}], v{vt1}
              s_mov_b64 exec, s[{mW1}:{mW1+1}]
              ds_read_b64 v[{S[1]}:{S[1]+1}], v{vt1}
              s_mov_b64 exec, s[{mQ2}:{mQ2+1}]
              ds_read_b64 v[{S[2]}:{S[2]+1}], v{vt1}
              s_mov_b64 exec, s[{mW3}:{mW3+1}]
              ds_read_b64 v[{S[3]}:{S[3]+1}], v{vt1}
              s_mov_b64 exec, -1""")
    def kr(e): return KR+(e%NKR)
    def readk(e,lane,vsrc):
        a(f"v_readlane_b32 s{kr(e)}, v{vsrc}, {lane}")
    def issue(e):
        a(f"""s_add_u32 m0, s{sRing}, {(e%RING)*1024}
              s_and_b32 s{t4}, s{kr(e)}, s{t3}
              buffer_load_dwordx4 v{vSwz}, s[{sXT}:{sXT+3}], s{t4} offen lds {XF}""")
    def trrd(e):
        xp=XP+4*(e%2)
        a(f"""ds_read_b64_tr_b16 v[{xp}:{xp+1}], v{vTr1} offset:{(e%RING)*1024}
              ds_read_b64_tr_b16 v[{xp+2}:{xp+3}], v{vTr2} offset:{(e%RING)*1024}""")
    def tpm(e):
        tb=T+8*(e%2); xp=XP+4*(e%2)
        a(f"""v_mfma_f32_4x4x4_16b_bf16 v[{tb}:{tb+3}], v[{A}:{A+1}], v[{xp}:{xp+1}], 0 cbsz:4 abid:{e}
              v_mfma_f32_4x4x4_16b_bf16 v[{tb+4}:{tb+7}], v[{A}:{A+1}], v[{xp+2}:{xp+3}], 0 cbsz:4 abid:{e}""")
    for e in range(U+1): readk(e,e,vO)
    a("s_nop 3")
    for e in range(U): issue(e)
    operand_reads()
    epi_addr()
    a(f"s_waitcnt vmcnt({U-1})")
    trrd(0)
    a(f"s_waitcnt vmcnt({U-2})")
    trrd(1)
    def batch(tail):
        a(f"""s_waitcnt lgkmcnt(0)
              v_mfma_f32_4x4x4_16b_bf16 v[{T}:{T+3}], v[{P[0]}:{P[0]+1}], v[{S[0]}:{S[0]+1}], 0
              v_mfma_f32_32x32x16_bf16 v[{RWE}:{RWE+15}], v[{R1}:{R1+3}], v[{B1e}:{B1e+3}], 0
              v_add_u32 v{vOad}, 64, v{vOad}
              v_mfma_f32_4x4x4_16b_bf16 v[{T}:{T+3}], v[{P[1]}:{P[1]+1}], v[{S[1]}:{S[1]+1}], v[{T}:{T+3}]
              v_mfma_f32_32x32x16_bf16 v[{RWO}:{RWO+15}], v[{R1}:{R1+3}], v[{B1o}:{B1o+3}], 0
              v_add_u32 v{vEad}, 64, v{vEad}
              v_mfma_f32_4x4x4_16b_bf16 v[{T}:{T+3}], v[{P[2]}:{P[2]+1}], v[{S[2]}:{S[2]+1}], v[{T}:{T+3}]
              v_mfma_f32_32x32x16_bf16 v[{RWE}:{RWE+15}], v[{R2}:{R2+3}], v[{B2e}:{B2e+3}], v[{RWE}:{RWE+15}]
              v_add_u32 v{vSad}, 64, v{vSad}
              v_mfma_f32_4x4x4_16b_bf16 v[{T}:{T+3}], v[{P[3]}:{P[3]+1}], v[{S[3]}:{S[3]+1}], v[{T}:{T+3}]
              v_mfma_f32_32x32x16_bf16 v[{RWO}:{RWO+15}], v[{R2}:{R2+3}], v[{B2o}:{B2o+3}], v[{RWO}:{RWO+15}]
              ds_read_b32 v{vOn}, v{vOad}
              ds_read_b32 v{vE}, v{vEad}
              ds_read_b32 v{vS}, v{vSad}
              s_nop 1
              v_cvt_pk_bf16_f32 v{A}, v{T}, v{T+1}
              v_cvt_pk_bf16_f32 v{A+1}, v{T+2}, v{T+3}
              s_nop 1""")
        tpm(0)
        for e in range(16):
            readk(e+U+1, e+U+1, vO)
            issue(e+U)
            a(f"s_waitcnt vmcnt({U-2})")
            trrd(e+2)
            a(f"s_and_b32 s{t5}, s{kr(e)}, 0x38")
            if e<15:
                a("s_waitcnt lgkmcnt(2)")
                tpm(e+1)
            tb=T+8*(e%2)
            a(f"s_set_gpr_idx_on s{t5}, gpr_idx(DST)" if not USEPK else f"s_set_gpr_idx_on s{t5}, gpr_idx(SRC2,DST)")
            if USEPK:
                pe=RWE+(e&~1); po=RWO+(e&~1); sel=e&1
                for (base,rw,tt) in ((0,pe,tb),(2,pe,tb+2),(4,po,tb+4),(6,po,tb+6)):
                    a(f"v_pk_fma_f32 v[{ACC+base}:{ACC+base+1}], v[{tt}:{tt+1}], v[{rw}:{rw+1}], v[{ACC+base}:{ACC+base+1}] op_sel:[0,{sel},0] op_sel_hi:[1,{sel},1]")
            else:
                for w in range(4): a(f"v_fmac_f32 v{ACC+w}, v{tb+w}, v{RWE+e}")
                for w in range(4): a(f"v_fmac_f32 v{ACC+4+w}, v{tb+4+w}, v{RWO+e}")
            a("s_set_gpr_idx_off")
            if tail:
                a(f"""s_cmp_eq_u32 s{sRem}, {e+1}
                      s_cbranch_scc1 K2_MAIN_DONE""")
            if e==4:
                a("s_waitcnt lgkmcnt(0)")
                operand_reads()
        a(f"v_mov_b32 v{vO}, v{vOn}")
    a(f"""K2_LOOP:
          s_cmp_lt_u32 s{sRem}, 17
          s_cbranch_scc1 K2_TAIL""")
    batch(False)
    a(f"""s_sub_u32 s{sRem}, s{sRem}, 16
          s_branch K2_LOOP
          K2_TAIL:""")
    batch(True)
    a(f"""K2_MAIN_DONE:
          s_mov_b64 exec, -1
          s_waitcnt vmcnt(0) lgkmcnt(0)""")
    ts(5)
    ts(13,True)
    a(f"""s_cmp_eq_u32 s{sMode}, 1
          s_cbranch_scc1 K2_SLOW_NEXT""")
    a(f"""K2_EPI:
          v_add_u32 v{vt0}, s{sWB}, v{vL4}""")
    for k in range(NPW):
        for w in range(4):
            n=4*k+w
            a(f"""v_cvt_pk_bf16_f32 v{RWE+n}, v{ACC+8*k+w}, v{ACC+8*k+4+w}
                  ds_write_b32 v{vt0}, v{RWE+n} offset:{n*272}""")
    a(f"""s_mul_i32 s{t0}, s{sB}, {NPB*1024}
          s_and_b32 s{t1}, s{sW}, 3
          s_lshl_b32 s{t1}, s{t1}, 6
          s_add_u32 s{t0}, s{t0}, s{t1}
          s_waitcnt vmcnt(0) lgkmcnt(0)""")
    if opt.get('tsepi'): ts(9)
    a("s_barrier")
    if opt.get('tsepi'): ts(1)
    BO=[RWE,RWE+16]
    DO=[ACC,ACC+8]
    OUTR=[ACC+16,ACC+20]
    def rdb(i):
        for kb in range(4):
            a(f"ds_read_b128 v[{BO[i%2]+4*kb}:{BO[i%2]+4*kb+3}], v{BAD[i]} offset:{kb*64}")
    def fin(i):
        d=DO[i%2]; o=OUTR[i%2]
        for p in range(4): a(f"v_cvt_pk_bf16_f32 v{o+p}, v{d+2*p}, v{d+2*p+1}")
        a(f"buffer_store_dwordx4 v[{o}:{o+3}], v{OAD[i]}, s[{sOUT}:{sOUT+3}], s{t0} offen {OUTF}")
    rdb(0)
    for i in range(5):
        if i<4:
            rdb(i+1); a("s_waitcnt lgkmcnt(4)")
        else:
            a("s_waitcnt lgkmcnt(0)")
        d=DO[i%2]
        for tt in range(2):
            for kb in range(4):
                c="0" if kb==0 else f"v[{d+4*tt}:{d+4*tt+3}]"
                a(f"v_mfma_f32_16x16x32_bf16 v[{d+4*tt}:{d+4*tt+3}], v[{WOFR+16*tt+4*kb}:{WOFR+16*tt+4*kb+3}], v[{BO[i%2]+4*kb}:{BO[i%2]+4*kb+3}], {c}")
        if i>=1: fin(i-1)
    a("s_nop 7")
    fin(4)
    if opt.get('tsepi'): ts(2)
    if TS or DBG2:
        a("s_waitcnt vmcnt(0)"); ts(6)
    a("s_endpgm")
    a("K2_EMPTY:")
    epi_addr()
    a("s_branch K2_MAIN_DONE")
    a(f"""K2_PF:
          v_lshlrev_b32 v{vt0}, 7, v{vLane}
          s_sub_u32 s{t0}, s{sB}, {NB}
          s_lshl_b32 s{t0}, s{t0}, 3
          s_add_u32 s{t0}, s{t0}, s{sW}
          s_lshl_b32 s{t0}, s{t0}, 13
          s_waitcnt lgkmcnt(0)""")
    srd(a,sXT,4,5,N*1024)
    if PF:
        a(f"""s_movk_i32 s{t1}, 27
              K2_PFL:
              buffer_load_dword v{vO}, v{vt0}, s[{sXT}:{sXT+3}], s{t0} offen
              s_add_u32 s{t0}, s{t0}, {6*8*8192}
              s_sub_u32 s{t1}, s{t1}, 1
              s_cmp_lg_u32 s{t1}, 0
              s_cbranch_scc1 K2_PFL""")
    a("s_endpgm")
    SR=T+4
    a(f"""K2_SLOW_INIT:
          s_mov_b32 s{sMode}, 1
          s_mov_b32 s{sWb}, 0
          s_and_b32 s{t0}, s{sW}, 3
          s_lshl_b32 s{t0}, s{t0}, 13
          s_add_u32 s{t1}, s{t0}, 4096
          s_waitcnt vmcnt(0)""")
    for i in range(4):
        a(f"buffer_load_dwordx4 v[{WOFR+4*i}:{WOFR+4*i+3}], v{vL16}, s[{sFRG}:{sFRG+3}], s{t0} offen offset:{1024*i}")
    for i in range(4):
        a(f"buffer_load_dwordx4 v[{WOFR+16+4*i}:{WOFR+16+4*i+3}], v{vL16}, s[{sFRG}:{sFRG+3}], s{t1} offen offset:{1024*i}")
    a(f"v_mov_b32 v{vt1}, v{vShare}")
    scan_incl(a,vt1)
    a(f"""s_nop 0
          v_readlane_b32 s{sNw}, v{vt1}, 63
          s_waitcnt lgkmcnt(0)
          s_barrier
          v_mov_b32 v{vt0}, 52
          v_mov_b32 v{vt1}, s{sNw}
          ds_max_u32 v{vt0}, v{vt1}
          s_waitcnt lgkmcnt(0)
          s_barrier
          ds_read_b32 v{vt1}, v{vt0}
          s_waitcnt lgkmcnt(0)
          v_readfirstlane_b32 s{sRounds}, v{vt1}
          s_branch K2_SLOW_ROUND
          K2_SLOW_NEXT:
          s_add_u32 s{sWb}, s{sWb}, 16
          s_cmp_ge_u32 s{sWb}, s{sRounds}
          s_cbranch_scc1 K2_EPI
          K2_SLOW_ROUND:
          s_barrier
          v_mov_b32 v{vt1}, 0
          s_cmp_lg_u32 s{sW}, 0
          s_cbranch_scc1 K2_SLOW_NOCNT
          v_cmpx_gt_u32 vcc, 12, v{vLane}
          ds_write_b32 v{vL4}, v{vt1}
          s_mov_b64 exec, -1
          K2_SLOW_NOCNT:
          v_add_u32 v{vt0}, s{sWB}, v{vL4}
          v_mov_b32 v{vE}, 0xffffff
          ds_write_b32 v{vt0}, v{vt1} offset:{BINS_OFF}
          ds_write_b32 v{vt0}, v{vE} offset:{OFFP_OFF}
          v_subrev_u32 v{vE}, s{sWb}, v{vPre}
          v_mov_b32 v{vO}, v{vA0}
          s_mov_b32 s{t0}, 0
          s_waitcnt lgkmcnt(0)
          s_barrier
          K2_SL1:
          v_cmp_lt_u32 vcc, s{t0}, v{vShare}
          s_cbranch_vccz K2_SL1_DONE
          v_cmp_gt_u32 s[{VM}:{VM+1}], 16, v{vE}
          v_lshlrev_b32 v{vt0}, 2, v{vE}
          v_add_u32 v{vt0}, s{sWB}, v{vt0}
          s_and_b64 exec, vcc, s[{VM}:{VM+1}]
          ds_write_b32 v{vt0}, v{vO} offset:{OFFP_OFF}
          s_mov_b64 exec, -1
          v_add_u32 v{vE}, 1, v{vE}
          v_add_u32 v{vO}, 2, v{vO}
          s_add_u32 s{t0}, s{t0}, 1
          s_branch K2_SL1
          K2_SL1_DONE:
          s_waitcnt lgkmcnt(0)
          ds_read_b32 v{T}, v{vLrd}
          s_waitcnt lgkmcnt(0)
          v_lshlrev_b32 v{T+1}, 2, v{T}
          v_mad_u32_u24 v{T}, v{T}, {GREC}, v{vq16}
          s_mov_b64 exec, s[{mQ012}:{mQ012+1}]
          buffer_load_dwordx4 v[{SR}:{SR+3}], v{T}, s[{sREC}:{sREC+3}], 0 offen
          s_mov_b64 exec, s[{mQ2}:{mQ2+1}]
          s_mov_b32 s{t3}, 0x80fffc00
          s_waitcnt vmcnt(0)
          buffer_load_dword v{SR+2}, v{T+1}, s[{sTB}:{sTB+3}], 0 offen
          s_waitcnt vmcnt(0)
          v_and_b32 v{vt0}, 0xfc, v{SR+2}
          ds_read_b32 v{vt1}, v{vt0} offset:{MAPL}
          v_cmp_gt_i32 s[{VM}:{VM+1}], 0, v{SR+2}
          s_add_u32 s{t2}, s{sWB}, {CAPW*RECB-HDR}
          v_mov_b32 v{vE}, s{t2}
          s_waitcnt lgkmcnt(0)
          v_and_or_b32 v{SR+2}, v{SR+2}, s{t3}, v{vt1}
          v_and_b32 v{vt0}, 0x1c, v{vt1}
          s_and_b64 exec, exec, s[{VM}:{VM+1}]
          ds_add_rtn_u32 v{SR+3}, v{vt0}, v{vOne}
          s_waitcnt lgkmcnt(0)
          v_mul_u32_u24 v{vt0}, {WSZ//4}, v{vt0}
          v_lshl_add_u32 v{vt1}, v{SR+3}, 2, v{vt0}
          v_add_u32 v{vt1}, {HDR+RING_OFF}, v{vt1}
          ds_write_b32 v{vt1}, v{SR+2}
          v_mad_u32_u24 v{vt1}, v{SR+3}, {RECB}, v{vt0}
          s_mov_b64 exec, s[{mQ2}:{mQ2+1}]
          v_cndmask_b32 v{SR+3}, v{vE}, v{vt1}, s[{VM}:{VM+1}]
          s_mov_b64 exec, s[{mQ012}:{mQ012+1}]
          s_nop 1
          v_add_u32_dpp v{T}, v{SR+3}, v{vQ16B} quad_perm:[2,2,2,2] row_mask:0xf bank_mask:0xf
          ds_write_b128 v{T}, v[{SR}:{SR+3}]
          s_mov_b64 exec, -1
          s_waitcnt lgkmcnt(0)
          s_barrier
          s_branch K2_AFTER
          K2_END:
          s_endpgm
          K2_CODE_END:""")

def desc(name,vgpr,sgpr):
    return f""".amdhsa_kernel {name}
  .amdhsa_next_free_vgpr {vgpr}
  .amdhsa_next_free_sgpr {sgpr}
  .amdhsa_accum_offset {vgpr}
  .amdhsa_group_segment_fixed_size 0
  .amdhsa_kernarg_size 88
  .amdhsa_user_sgpr_count 2
  .amdhsa_user_sgpr_kernarg_segment_ptr 1
  .amdhsa_system_sgpr_workgroup_id_x 1
  .amdhsa_float_denorm_mode_32 3
.end_amdhsa_kernel"""

HEADER=open('standalone__tensor_product_equiv_mace__graph.s.ref').read().split('; Override launch')[0]

def generate(opt):
    a=Asm()
    a.raw(HEADER.rstrip('\n'))
    l1=f"; @launch kernel=mace_prep_kernel grid=({NB},1,1) block=({opt.get('k1th',640)},1,1) lds={K1_LDS}"
    l2=f"; @launch kernel={KN} grid=({NWG2},1,1) block=(512,1,1) lds={K2_LDS}"
    xl=str(opt.get('xl','12'))
    for ch in xl:
        a.raw(l1 if ch=='1' else l2)
    a.raw('.amdgcn_target "amdgcn-amd-amdhsa--gfx950"')
    a.raw(".text")
    a.raw(".globl mace_prep_kernel")
    a.raw(f".globl {KN}")
    gen_k1(a,opt)
    gen_k2(a,opt)
    a.raw('.section .rodata,"a"')
    a.raw(".p2align 6")
    a.raw(desc("mace_prep_kernel",((opt['_k1_vgpr']+3)//4)*4,72))
    a.raw(".p2align 6")
    a.raw(desc(KN,256,102))
    return a.text()

if __name__=="__main__":
    opt={}
    out="standalone__tensor_product_equiv_mace__graph.s"
    for arg in sys.argv[1:]:
        if arg.startswith("-o"): out=arg[2:]
        else:
            k,v=arg.split("=")
            try: v=json.loads(v)
            except Exception: pass
            opt[k]=v
    open(out,"w").write(generate(opt))
    print("wrote",out)
```

```python
import sys, json

N=10000; E=320000; NB=250; NPB=40; CH=1280; NW=8; NPW=5; NWG2=256
RECB=48
GREC=40
REC_OFF=0x0;        REC_SZ=E*GREC
TBL_OFF=0x1000000;  TBL_SZ=256*1024
KEY_OFF=0x1200000;  KEY_SZ=E*4
FRG_OFF=0x1100000;  WOF_SZ=32768; WRF_REL=WOF_SZ; CGF_REL=WOF_SZ+4096; FRG_SZ=WOF_SZ+4096+128
WS_USED=KEY_OFF+KEY_SZ
DIAG_OFF=0x1C00000
KN="standalone__tensor_product_equiv_mace__graph_kernel"

class Asm:
    def __init__(self): self.l=[]
    def __call__(self,s):
        for line in s.strip('\n').split('\n'):
            t=line.strip()
            if not t: continue
            self.l.append(t if t.endswith(':') else '    '+t)
    def raw(self,s): self.l.append(s)
    def text(self): return '\n'.join(self.l)+'\n'

def srd(a,r,lo,hi,size,off=0):
    if off:
        a(f"""s_add_u32 s{r}, s{lo}, {hex(off)}
              s_addc_u32 s{r+1}, s{hi}, 0""")
    else:
        a(f"""s_mov_b32 s{r}, s{lo}
              s_mov_b32 s{r+1}, s{hi}""")
    a(f"""s_mov_b32 s{r+2}, {hex(size)}
          s_mov_b32 s{r+3}, 0x00020000""")

def scan_incl(a,v):
    for m in ("row_shr:1 row_mask:0xf bank_mask:0xf bound_ctrl:0","row_shr:2 row_mask:0xf bank_mask:0xf bound_ctrl:0",
              "row_shr:4 row_mask:0xf bank_mask:0xf bound_ctrl:0","row_shr:8 row_mask:0xf bank_mask:0xf bound_ctrl:0",
              "row_bcast:15 row_mask:0xa bank_mask:0xf","row_bcast:31 row_mask:0xc bank_mask:0xf"):
        a(f"""s_nop 1
              v_add_u32_dpp v{v}, v{v}, v{v} {m}""")

K1_LDS=7168+CH*GREC+CH*4
def gen_k1(a, opt):
    STF=opt.get('k1_rec_flags','sc1')
    LDF=opt.get('k1_ld_flags','nt')
    CODEPF=opt.get('codepf',True)
    TBF=opt.get('k1_tb_flags','sc1')
    TH=opt.get('k1th',640)
    EPT=CH//TH; EAU=2*CH//TH; CPU=CH*GREC//16//TH
    assert CH%TH==0 and (CH*GREC//16)%TH==0
    BINS=0; STARTS=1024; BR=2048; STAGE=7168; KST=7168+CH*GREC
    TS=opt.get('ts',False)
    vT4,vT8,vT16,vL4,vOne=1,2,3,4,5
    DST=8; SRC=DST+EPT; SH=16;
    KEY=SH+2*EPT; BIN=KEY+EPT; RK=BIN+EPT; BA=RK+EPT; EA=((BA+EPT+3)//4)*4; BRV=EA+4*EAU; PS=BRV+EAU; TMP=PS+EAU
    NV=TMP+24
    vF0,vF1,vF2,vF3,vTs0,vTs1,vPf0,vPf1=NV,NV+1,NV+2,NV+3,NV+4,NV+5,NV+6,NV+7
    opt['_k1_vgpr']=NV+8
    DBG=opt.get('dbg',False)
    def ts(i):
        if DBG:
            a(f"""s_memrealtime s[64:65]
                  s_load_dwordx2 s[70:71], s[0:1], 72
                  s_waitcnt lgkmcnt(0)
                  v_mov_b32 v{vTs0}, s64
                  v_mov_b32 v{vTs1}, {4*i}
                  s_and_b32 s66, s2, 31
                  s_or_b32 s66, s66, s22
                  s_cmp_lg_u32 s66, 0
                  s_cbranch_scc1 DBG_{i}
                  s_mov_b64 s[64:65], exec
                  s_mov_b64 exec, 1
                  global_atomic_umax v{vTs1}, v{vTs0}, s[70:71]
                  v_not_b32 v{vTs0}, v{vTs0}
                  global_atomic_umax v{vTs1}, v{vTs0}, s[70:71] offset:32
                  s_mov_b64 exec, s[64:65]
                  DBG_{i}:""")
            return
        if not TS: return
        a(f"""s_memrealtime s[64:65]
              s_waitcnt lgkmcnt(0)
              v_mov_b32 v{vTs0}, s64
              s_lshl_b32 s66, s2, 4
              s_add_u32 s66, s66, s22
              s_lshl_b32 s66, s66, 6
              s_add_u32 s66, s66, {DIAG_OFF+4*i}
              v_mov_b32 v{vTs1}, s66
              s_mov_b64 s[64:65], exec
              s_mov_b64 exec, 1
              global_store_dword v{vTs1}, v{vTs0}, s[20:21]
              s_mov_b64 exec, s[64:65]""")
    sDST,sSRC,sSH,sEA,sWS,sFR=24,28,32,36,44,48
    a.raw(".p2align 8")
    a.raw(".type mace_prep_kernel,@function")
    a.raw("mace_prep_kernel:")
    a(f"""s_cmp_ge_u32 s2, {NB}
          s_cbranch_scc1 K1_END
          s_load_dwordx16 s[4:19], s[0:1], 0
          s_load_dwordx2 s[20:21], s[0:1], 80""")
    if CODEPF:
        a(f"""s_getpc_b64 s[68:69]
              K1_PC:
              v_lshlrev_b32 v{vPf0}, 7, v0
              v_cmp_gt_u32 vcc, 20, v0
              s_and_saveexec_b64 s[54:55], vcc
              global_load_dword v{vPf1}, v{vPf0}, s[68:69]
              s_mov_b64 exec, s[54:55]""")
    a(f"""v_lshlrev_b32 v{vT4}, 2, v0
          v_lshlrev_b32 v{vT8}, 3, v0
          v_lshlrev_b32 v{vT16}, 4, v0
          v_lshrrev_b32 v6, 6, v0
          v_and_b32 v{vL4}, 63, v0
          v_lshlrev_b32 v{vL4}, 2, v{vL4}
          v_readfirstlane_b32 s22, v6
          v_mov_b32 v{vOne}, 1
          v_mov_b32 v7, 0
          v_cmp_gt_u32 vcc, 0x100, v0
          s_and_saveexec_b64 s[54:55], vcc
          ds_write_b32 v{vT4}, v7
          s_mov_b64 exec, s[54:55]
          s_mul_i32 s23, s2, {CH}
          s_lshl_b32 s52, s23, 2
          s_lshl_b32 s53, s23, 3
          s_lshl_b32 s55, s23, 5
          s_waitcnt lgkmcnt(0)""")
    ts(0)
    srd(a,sDST,8,9,E*4); srd(a,sSRC,6,7,E*4); srd(a,sSH,10,11,E*8); srd(a,sEA,12,13,E*32)
    def off(o):
        return o if o<4096 else None
    def ld(kind,dst,vaddr,srd_,sbase,o):
        if o<4096:
            a(f"buffer_load_{kind} {dst}, v{vaddr}, s[{srd_}:{srd_+3}], s{sbase} offen offset:{o} {LDF}")
        else:
            a(f"""s_add_u32 s54, s{sbase}, {o}
                  buffer_load_{kind} {dst}, v{vaddr}, s[{srd_}:{srd_+3}], s54 offen {LDF}""")
    for i in range(EPT): ld("dword",f"v{DST+i}",vT4,sDST,52,i*TH*4)
    for i in range(EPT): ld("dword",f"v{SRC+i}",vT4,sSRC,52,i*TH*4)
    for i in range(EPT): ld("dwordx2",f"v[{SH+2*i}:{SH+2*i+1}]",vT8,sSH,53,i*TH*8)
    a("s_barrier")
    for i in range(EAU): ld("dwordx4",f"v[{EA+4*i}:{EA+4*i+3}]",vT16,sEA,55,i*TH*16)
    srd(a,sWS,20,21,WS_USED)
    a(f"""s_mov_b32 s67, 0
          s_cmp_ge_u32 s2, 37
          s_cbranch_scc1 K1_NOFR
          s_cmp_ge_u32 s22, 4
          s_cbranch_scc1 K1_NOFR
          s_mov_b32 s67, 1
          s_cmp_ge_u32 s2, 32
          s_cbranch_scc1 K1_FR2
          s_mov_b32 s{sFR}, s18
          s_mov_b32 s{sFR+1}, s19
          s_mov_b32 s{sFR+2}, 32768
          s_mov_b32 s{sFR+3}, 0x00020000
          v_lshrrev_b32 v{vF0}, 6, v0
          v_lshlrev_b32 v{vF0}, 10, v{vF0}
          v_and_b32 v{vF1}, 3, v0
          v_lshl_or_b32 v{vF0}, v{vF1}, 8, v{vF0}
          v_bfe_u32 v{vF1}, v0, 4, 2
          v_lshl_or_b32 v{vF0}, v{vF1}, 4, v{vF0}
          v_bfe_u32 v{vF1}, v0, 2, 2
          v_lshl_or_b32 v{vF0}, v{vF1}, 1, v{vF0}
          s_and_b32 s60, s2, 3
          s_lshl_b32 s60, s60, 12
          s_lshr_b32 s61, s2, 3
          s_lshl_b32 s61, s61, 6
          s_add_u32 s60, s60, s61
          s_bfe_u32 s61, s2, 0x10002
          s_lshl_b32 s61, s61, 3
          s_add_u32 s60, s60, s61
          v_add_u32 v{vF1}, 16384, v{vF0}
          s_lshl_b32 s62, s2, 10
          s_add_u32 s62, s62, {hex(FRG_OFF)}
          s_branch K1_FRLD
          K1_FR2:
          s_cmp_eq_u32 s2, 36
          s_cbranch_scc1 K1_FR3
          s_mov_b32 s{sFR}, s16
          s_mov_b32 s{sFR+1}, s17
          s_mov_b32 s{sFR+2}, 4096
          s_mov_b32 s{sFR+3}, 0x00020000
          v_lshrrev_b32 v{vF0}, 7, v0
          v_lshlrev_b32 v{vF0}, 11, v{vF0}
          v_and_b32 v{vF1}, 3, v0
          v_lshl_or_b32 v{vF0}, v{vF1}, 9, v{vF0}
          v_bfe_u32 v{vF1}, v0, 2, 5
          v_lshl_or_b32 v{vF0}, v{vF1}, 1, v{vF0}
          s_and_b32 s60, s2, 1
          s_lshl_b32 s60, s60, 6
          s_bfe_u32 s61, s2, 0x10001
          s_lshl_b32 s61, s61, 7
          s_add_u32 s60, s60, s61
          v_add_u32 v{vF1}, 256, v{vF0}
          s_sub_u32 s62, s2, 32
          s_lshl_b32 s62, s62, 10
          s_add_u32 s62, s62, {hex(FRG_OFF+WRF_REL)}
          s_branch K1_FRLD
          K1_FR3:
          s_mov_b32 s{sFR}, s14
          s_mov_b32 s{sFR+1}, s15
          s_mov_b32 s{sFR+2}, 128
          s_mov_b32 s{sFR+3}, 0x00020000
          v_lshrrev_b32 v{vF0}, 3, v0
          v_lshlrev_b32 v{vF0}, 5, v{vF0}
          v_and_b32 v{vF1}, 1, v0
          v_lshl_or_b32 v{vF0}, v{vF1}, 4, v{vF0}
          v_bfe_u32 v{vF1}, v0, 1, 2
          v_lshl_or_b32 v{vF0}, v{vF1}, 1, v{vF0}
          s_mov_b32 s60, 0
          v_add_u32 v{vF1}, 8, v{vF0}
          s_mov_b32 s62, {hex(FRG_OFF+CGF_REL)}
          K1_FRLD:
          buffer_load_ushort v{vF2}, v{vF0}, s[{sFR}:{sFR+3}], s60 offen
          buffer_load_ushort v{vF3}, v{vF1}, s[{sFR}:{sFR+3}], s60 offen
          K1_NOFR:""")
    if CODEPF:
        a(f"""s_cmp_lg_u32 s2, 40
              s_cbranch_scc1 K1_NOCPF
              s_cmp_lg_u32 s22, 0
              s_cbranch_scc1 K1_NOCPF
              s_add_u32 s68, s68, {KN}-K1_PC
              s_addc_u32 s69, s69, 0
              v_lshlrev_b32 v{vPf0}, 5, v{vL4}
              v_cmpx_gt_u32 vcc, K2_CODE_END-{KN}, v{vPf0}
              global_load_dword v{vPf1}, v{vPf0}, s[68:69]
              v_add_u32 v{vPf0}, 8192, v{vPf0}
              v_cmpx_gt_u32 vcc, K2_CODE_END-{KN}, v{vPf0}
              global_load_dword v{vPf1}, v{vPf0}, s[68:69]
              s_mov_b64 exec, -1
              K1_NOCPF:""")
    a(f"s_waitcnt vmcnt({2*EPT+EAU})")
    ts(1)
    for i in range(EPT):
        a(f"""v_mul_u32_u24 v{BIN+i}, 0xcccd, v{DST+i}
              v_lshrrev_b32 v{BIN+i}, 21, v{BIN+i}
              v_lshlrev_b32 v{BA+i}, 2, v{BIN+i}
              ds_add_rtn_u32 v{RK+i}, v{BA+i}, v{vOne}""")
    for i in range(EPT):
        a(f"""v_mul_u32_u24 v{KEY+i}, 40, v{BIN+i}
              v_sub_u32 v{KEY+i}, v{DST+i}, v{KEY+i}
              v_lshlrev_b32 v{KEY+i}, 2, v{KEY+i}
              v_or_b32 v{KEY+i}, 0x80000000, v{KEY+i}""")
    a(f"s_waitcnt vmcnt({EPT+EAU})")
    for i in range(EPT):
        a(f"v_lshl_or_b32 v{KEY+i}, v{SRC+i}, 10, v{KEY+i}")
    a("s_waitcnt lgkmcnt(0)")
    for i in range(EPT):
        a(f"""v_lshl_or_b32 v{TMP+i}, v{RK+i}, 8, v{BIN+i}
              ds_write_b32 v{vT4}, v{TMP+i} offset:{BR+i*TH*4}""")
    S0=TMP+8
    S0=((S0+3)//4)*4
    a(f"""s_waitcnt lgkmcnt(0)
          s_barrier
          s_cmp_lg_u32 s22, 0
          s_cbranch_scc1 K1_NOSCAN
          v_lshlrev_b32 v6, 2, v{vL4}
          ds_read_b128 v[{S0}:{S0+3}], v6 offset:{BINS}
          s_waitcnt lgkmcnt(0)
          v_add_u32 v{TMP}, v{S0}, v{S0+1}
          v_add_u32 v{TMP+1}, v{TMP}, v{S0+2}
          v_add_u32 v{TMP+2}, v{TMP+1}, v{S0+3}
          v_mov_b32 v{TMP+3}, v{TMP+2}""")
    scan_incl(a,TMP+3)
    Q=S0+4; R_=S0+8
    a(f"""v_sub_u32 v{Q}, v{TMP+3}, v{TMP+2}
          v_add_u32 v{Q+1}, v{Q}, v{S0}
          v_add_u32 v{Q+2}, v{Q}, v{TMP}
          v_add_u32 v{Q+3}, v{Q}, v{TMP+1}
          ds_write_b128 v6, v[{Q}:{Q+3}] offset:{STARTS}""")
    for i in range(4):
        a(f"""v_add_u32 v{R_+i}, s23, v{Q+i}
              v_lshl_or_b32 v{R_+i}, v{S0+i}, 19, v{R_+i}""")
    a(f"""s_lshl_b32 s60, s2, 10
          s_add_u32 s60, s60, {hex(TBL_OFF)}
          buffer_store_dwordx4 v[{R_}:{R_+3}], v6, s[{sWS}:{sWS+3}], s60 offen {TBF}
          s_waitcnt lgkmcnt(0)""")
    a.raw("K1_NOSCAN:")
    ts(2)
    a("s_barrier")
    for i in range(EPT): a(f"ds_read_b32 v{PS+i}, v{BA+i} offset:{STARTS}")
    a(f"""v_lshrrev_b32 v6, 1, v0
          v_lshlrev_b32 v6, 2, v6""")
    for i in range(EAU): a(f"ds_read_b32 v{BRV+i}, v6 offset:{BR+i*(TH//2)*4}")
    a(f"""s_mul_i32 s60, s23, {GREC}
          v_and_b32 v7, 1, v0
          v_lshlrev_b32 v7, 4, v7
          v_add_u32 v7, {STAGE}, v7
          s_waitcnt lgkmcnt({min(EAU,15)})""")
    for i in range(EPT):
        a(f"""v_add_u32 v{PS+i}, v{PS+i}, v{RK+i}
              v_lshlrev_b32 v{TMP+i}, 2, v{PS+i}
              v_add_u32 v{TMP+i}, {KST}, v{TMP+i}
              ds_write_b32 v{TMP+i}, v{KEY+i}
              v_mul_u32_u24 v{RK+i}, {GREC}, v{PS+i}""")
    a("s_waitcnt lgkmcnt(0)")
    for i in range(EAU):
        a(f"""v_and_b32 v{PS+i}, 0xff, v{BRV+i}
              v_lshlrev_b32 v{PS+i}, 2, v{PS+i}
              ds_read_b32 v{PS+i}, v{PS+i} offset:{STARTS}""")
    a(f"s_waitcnt vmcnt({EAU})")
    for i in range(EPT):
        a(f"ds_write_b64 v{RK+i}, v[{SH+2*i}:{SH+2*i+1}] offset:{STAGE+32}")
    for i in range(EAU):
        a(f"v_lshrrev_b32 v{BRV+i}, 8, v{BRV+i}")
    a(f"s_waitcnt lgkmcnt({EPT})")
    for i in range(EAU):
        a(f"""v_add_u32 v{PS+i}, v{PS+i}, v{BRV+i}
              v_mad_u32_u24 v{PS+i}, v{PS+i}, {GREC}, v7""")
    for i in range(EAU):
        a(f"""s_waitcnt vmcnt({EAU-1-i})
              ds_write2_b64 v{PS+i}, v[{EA+4*i}:{EA+4*i+1}], v[{EA+4*i+2}:{EA+4*i+3}] offset0:0 offset1:1""")
    CO=EA
    assert 4*(CPU+1)<=4*EAU+2*EAU+8, "copy regs"
    a(f"""s_waitcnt lgkmcnt(0)
          s_barrier
          v_add_u32 v6, {STAGE}, v{vT16}""")
    for i in range(CPU+1):
        a(f"ds_read_b128 v[{CO+4*i}:{CO+4*i+3}], v6 offset:{i*TH*16}")
    for i in range(CPU):
        a(f"""s_waitcnt lgkmcnt({CPU-i})
              buffer_store_dwordx4 v[{CO+4*i}:{CO+4*i+3}], v{vT16}, s[{sWS}:{sWS+3}], s60 offen {STF}
              s_add_u32 s60, s60, {TH*16}""")
    a(f"""s_mul_i32 s60, s23, 4
          s_add_u32 s60, s60, {hex(KEY_OFF)}
          v_cmp_gt_u32 vcc, 320, v0
          s_and_saveexec_b64 s[54:55], vcc
          s_waitcnt lgkmcnt(0)
          buffer_store_dwordx4 v[{CO+4*CPU}:{CO+4*CPU+3}], v{vT16}, s[{sWS}:{sWS+3}], s60 offen {STF}
          s_mov_b64 exec, s[54:55]""")
    ts(3)
    if TS or DBG:
        a("s_waitcnt vmcnt(0)"); ts(5)
    a(f"""s_cmp_eq_u32 s67, 0
          s_cbranch_scc1 K1_END
          s_waitcnt vmcnt({CPU+1})
          v_lshl_or_b32 v{vF2}, v{vF3}, 16, v{vF2}
          s_cmp_lg_u32 s2, 36
          s_cbranch_scc1 K1_FRST
          v_cmpx_gt_u32 vcc, 32, v0
          K1_FRST:
          buffer_store_dword v{vF2}, v{vT4}, s[{sWS}:{sWS+3}], s62 offen""")
    a.raw("K1_END:")
    a("s_endpgm")

CAPW=224
RING=8
RECL_SZ=(CAPW+1)*RECB
OFFP_OFF=RECL_SZ
BINS_OFF=OFFP_OFF+1152
RING_OFF=BINS_OFF+256
WSZ=RING_OFF+RING*1024
NODECNT=64; MAPL=224; INVL=384; HDR=544
K2_LDS=HDR+NW*WSZ
assert WSZ%16==0 and RING_OFF%16==0 and HDR%16==0 and K2_LDS<=163840

def gen_k2(a, opt):
    U=opt.get('U',8)
    USEPK=opt.get('pk',True)
    BSH=opt.get('bucket_shift',18)
    TS=opt.get('ts',False)
    RECF=opt.get('rec_ld_flags','')
    OUTF=opt.get('out_flags','nt')
    XF=opt.get('x_flags','')
    PF=opt.get('pf',True); CODEPF=opt.get('codepf',True); NPF2=opt.get('pf2',0)
    BAL=opt.get('bal',True); XCDMAP=opt.get('xcdmap',True)
    sB=3
    sXT,sREC,sTB,sFRG,sOUT=12,16,20,24,28
    sRing=38
    mQ012,mQ2,mW0,mW1,mW3,mH0,mH1=40,42,44,46,48,50,52
    sW,sWB,sN,sNw,sMode,sWb,sRounds,sSH=54,55,56,57,58,59,60,61
    t0,t1,t2,t3,t4,t5=62,63,64,65,66,67
    sRem=68; sCAP=69
    KR=70; NKR=16
    VM=86
    vLane,vL16,vOne,vO,vOn,vE,vS=1,2,3,4,5,6,7
    B1e,B2e,B1o,B2o=8,12,16,20
    P=[24,26,28,30]
    ACC=32; RWE=72; RWO=88; T=104; XP=120; A=128
    vEad,vSad,vOad,vKH,vt0,vt1,vL4,vSwz,vTr1,vTr2=130,131,132,133,134,135,136,137,138,139
    R1,R2=140,144; S=[148,150,152,154]
    vPre,vA0,vQ16B,vShare,vLrd,vq16,vTB=156,157,158,159,160,161,162
    WOFR=164
    REC=192; NIT=16
    VF=T
    assert U<=8

    DBG2=opt.get('dbg2',False)
    def ts(i,cyc=False):
        if DBG2:
            m={7:0,8:1,2:2,3:3,15:4,5:5,6:6}
            if i not in m or cyc: return
            j=m[i]
            a(f"""s_memrealtime s[32:33]
                  s_load_dwordx2 s[34:35], s[0:1], 72
                  s_waitcnt lgkmcnt(0)
                  v_mov_b32 v{vt0}, s32
                  v_mov_b32 v{vt1}, {4*j}
                  s_and_b32 s36, s2, 31
                  s_or_b32 s36, s36, s{sW}
                  s_cmp_lg_u32 s36, 0
                  s_cbranch_scc1 DBG2_{i}
                  s_mov_b64 s[32:33], exec
                  s_mov_b64 exec, 1
                  global_atomic_umax v{vt1}, v{vt0}, s[34:35]
                  v_not_b32 v{vt0}, v{vt0}
                  global_atomic_umax v{vt1}, v{vt0}, s[34:35] offset:32
                  s_mov_b64 exec, s[32:33]
                  DBG2_{i}:""")
            return
        if not TS: return
        a(f"""{'s_memtime' if cyc else 's_memrealtime'} s[32:33]
              s_waitcnt lgkmcnt(0)
              v_mov_b32 v{vt0}, s32
              s_lshl_b32 s34, s{sB}, 4
              s_add_u32 s34, s34, s{sW}
              s_lshl_b32 s34, s34, 6
              s_add_u32 s34, s34, {DIAG_OFF+0x40000+4*i}
              v_mov_b32 v{vt1}, s34
              s_mov_b64 s[32:33], exec
              s_mov_b64 exec, 1
              global_store_dword v{vt1}, v{vt0}, s[10:11]
              s_mov_b64 exec, s[32:33]""")

    a.raw(".p2align 8")
    a.raw(f".type {KN},@function")
    a.raw(f"{KN}:")
    a(f"""s_cmp_ge_u32 s2, {NWG2}
          s_cbranch_scc1 K2_END
          s_load_dwordx2 s[4:5], s[0:1], 0
          s_load_dwordx2 s[8:9], s[0:1], 64
          s_load_dwordx2 s[10:11], s[0:1], 80
          s_getpc_b64 s[6:7]
          K2_PC:""")
    a(f"""s_and_b32 s{t1}, s2, 7
          s_lshr_b32 s{t0}, s2, 3
          s_mul_i32 s{sB}, s{t1}, 31
          s_min_u32 s{t2}, s{t1}, 2
          s_add_u32 s{sB}, s{sB}, s{t2}
          s_add_u32 s{sB}, s{sB}, s{t0}
          s_add_u32 s{t3}, s{t1}, {NB-2}
          s_cmp_eq_u32 s{t0}, 31
          s_cselect_b32 s{t4}, s{t2}, 0
          s_cmp_eq_u32 s{t4}, 2
          s_cselect_b32 s{sB}, s{t3}, s{sB}""")
    a(f"""v_and_b32 v{vLane}, 63, v0
          v_lshrrev_b32 v{vt0}, 6, v0
          v_lshlrev_b32 v{vL16}, 4, v{vLane}
          v_readfirstlane_b32 s{sW}, v{vt0}
          v_lshlrev_b32 v{vL4}, 2, v{vLane}
          v_lshrrev_b32 v{vt0}, 1, v{vLane}
          v_lshlrev_b32 v{vt0}, 10, v{vt0}
          s_cmp_ge_u32 s{sB}, {NB}
          s_cbranch_scc1 K2_PF
          s_lshl_b32 s{t0}, s{sB}, 2
          s_lshl_b32 s{t1}, s{sW}, 15
          s_add_u32 s{t0}, s{t0}, s{t1}
          s_lshl_b32 s{t1}, s{sW}, 6
          s_sub_u32 s{t1}, {2*NB}, s{t1}
          v_mov_b32 v{vTB}, 0
          v_and_b32 v{vt1}, 3, v{vLane}
          v_lshlrev_b32 v{vt1}, 5, v{vt1}
          s_waitcnt lgkmcnt(0)""")
    srd(a,sTB,10,11,TBL_SZ,TBL_OFF)
    a(f"""v_cmpx_gt_u32 vcc, s{t1}, v{vLane}
          buffer_load_dword v{vTB}, v{vt0}, s[{sTB}:{sTB+3}], s{t0} offen
          s_mov_b64 exec, -1""")
    srd(a,sFRG,10,11,FRG_SZ,FRG_OFF)
    a(f"s_mov_b32 s{t0}, {WRF_REL}")
    for f in range(4):
        a(f"buffer_load_dwordx4 v[{B1e+4*f}:{B1e+4*f+3}], v{vL16}, s[{sFRG}:{sFRG+3}], s{t0} offen offset:{1024*f}")
    a(f"""s_mov_b32 s{t1}, {CGF_REL}
          buffer_load_dwordx4 v[24:27], v{vt1}, s[{sFRG}:{sFRG+3}], s{t1} offen
          buffer_load_dwordx4 v[28:31], v{vt1}, s[{sFRG}:{sFRG+3}], s{t1} offen offset:16""")
    if CODEPF:
        a(f"""s_cmp_lg_u32 s{sW}, 7
              s_cbranch_scc1 K2_NOCPF
              s_sub_u32 s6, s6, K2_PC-{KN}
              s_subb_u32 s7, s7, 0
              v_lshlrev_b32 v{vE}, 7, v{vLane}
              v_cmpx_gt_u32 vcc, K2_CODE_END-{KN}, v{vE}
              global_load_dword v0, v{vE}, s[6:7]
              v_add_u32 v{vE}, 8192, v{vE}
              v_cmpx_gt_u32 vcc, K2_CODE_END-{KN}, v{vE}
              global_load_dword v0, v{vE}, s[6:7]
              s_mov_b64 exec, -1
              K2_NOCPF:""")
    srd(a,sREC,10,11,REC_SZ,REC_OFF)
    srd(a,sTB,10,11,KEY_SZ,KEY_OFF)
    srd(a,sXT,4,5,N*1024)
    srd(a,sOUT,8,9,N*1024)
    ts(7)
    a(f"""v_mov_b32 v{vOne}, 1
          s_mov_b32 s{mQ012}, 0x77777777
          s_mov_b32 s{mQ012+1}, 0x77777777
          s_mov_b32 s{mQ2}, 0x44444444
          s_mov_b32 s{mQ2+1}, 0x44444444
          s_mov_b32 s{mW0}, 0x11111111
          s_mov_b32 s{mW0+1}, 0x11111111
          s_mov_b32 s{mW1}, 0x22222222
          s_mov_b32 s{mW1+1}, 0x22222222
          s_mov_b32 s{mW3}, 0x88888888
          s_mov_b32 s{mW3+1}, 0x88888888
          s_mov_b32 s{mH0}, 0x0f0f0f0f
          s_mov_b32 s{mH0+1}, 0x0f0f0f0f
          s_mov_b32 s{mH1}, 0xf0f0f0f0
          s_mov_b32 s{mH1+1}, 0xf0f0f0f0
          s_mul_i32 s{sWB}, s{sW}, {WSZ}
          s_add_u32 s{sWB}, s{sWB}, {HDR}
          s_add_u32 s{sSH}, s{sWB}, 32
          s_add_u32 s{sRing}, s{sWB}, {RING_OFF}
          s_mov_b32 s{sCAP}, {CAPW}
          s_mov_b32 s{sMode}, 0
          v_and_b32 v{vt0}, 3, v{vLane}
          v_lshrrev_b32 v{vt1}, 2, v{vLane}
          v_lshlrev_b32 v{vq16}, 4, v{vt0}
          v_add_u32 v{vQ16B}, {HDR}, v{vq16}
          v_lshlrev_b32 v{vLrd}, 2, v{vt1}
          v_add_u32 v{vLrd}, s{sWB}, v{vLrd}
          v_add_u32 v{vLrd}, {OFFP_OFF}, v{vLrd}""")
    a(f"""v_mov_b32 v{vt1}, 0
          s_cmp_lg_u32 s{sW}, 0
          s_cbranch_scc1 K2_NOCNT
          v_cmpx_gt_u32 vcc, 56, v{vLane}
          ds_write_b32 v{vL4}, v{vt1}
          s_mov_b64 exec, -1
          K2_NOCNT:
          v_add_u32 v{vt0}, s{sWB}, v{vL4}
          v_mov_b32 v{vE}, 0xffffff
          ds_write_b32 v{vt0}, v{vt1} offset:{BINS_OFF}
          ds_write_b32 v{vt0}, v{vE} offset:{OFFP_OFF}
          ds_write_b32 v{vt0}, v{vE} offset:{OFFP_OFF+256}
          ds_write_b32 v{vt0}, v{vE} offset:{OFFP_OFF+512}
          ds_write_b32 v{vt0}, v{vE} offset:{OFFP_OFF+768}""")
    ts(0)
    a(f"""v_and_b32 v{vt1}, 1, v{vLane}
          s_waitcnt vmcnt(6)""")
    ts(8)
    a(f"""v_and_b32 v{vt1}, 1, v{vLane}
          v_lshrrev_b32 v{vShare}, 19, v{vTB}
          v_and_b32 v{vA0}, 0x7ffff, v{vTB}
          v_add_u32 v{vA0}, v{vA0}, v{vt1}
          v_xor_b32 v{vt1}, 1, v{vt1}
          v_add_u32 v{vShare}, v{vShare}, v{vt1}
          v_lshrrev_b32 v{vShare}, 1, v{vShare}
          v_mov_b32 v{vPre}, v{vShare}""")
    scan_incl(a,vPre)
    a(f"""s_nop 0
          v_readlane_b32 s{sNw}, v{vPre}, 63
          v_sub_u32 v{vPre}, v{vPre}, v{vShare}
          s_nop 1
          s_cmp_le_u32 s{sNw}, {16*NIT}
          s_cbranch_scc1 K2_LISTN
          s_mov_b32 s{sNw}, 0
          s_mov_b32 s{sMode}, 2
          K2_LISTN:
          v_lshlrev_b32 v{vE}, 2, v{vPre}
          v_add_u32 v{vE}, s{sWB}, v{vE}
          v_mov_b32 v{vS}, v{vShare}
          v_mov_b32 v{vO}, v{vA0}
          s_cmp_eq_u32 s{sMode}, 2
          s_cbranch_scc1 K2_L1_DONE
          K2_L1:
          v_cmpx_lt_u32 vcc, 0, v{vS}
          ds_write_b32 v{vE}, v{vO} offset:{OFFP_OFF}
          v_add_u32 v{vt0}, 2, v{vO}
          v_cmpx_lt_u32 vcc, 1, v{vS}
          ds_write_b32 v{vE}, v{vt0} offset:{OFFP_OFF+4}
          v_add_u32 v{vt1}, 4, v{vO}
          v_cmpx_lt_u32 vcc, 2, v{vS}
          ds_write_b32 v{vE}, v{vt1} offset:{OFFP_OFF+8}
          v_add_u32 v{vt0}, 6, v{vO}
          v_cmpx_lt_u32 vcc, 3, v{vS}
          ds_write_b32 v{vE}, v{vt0} offset:{OFFP_OFF+12}
          v_subrev_u32 v{vS}, 4, v{vS}
          v_add_u32 v{vO}, 8, v{vO}
          v_add_u32 v{vE}, 16, v{vE}
          s_cbranch_execnz K2_L1
          s_mov_b64 exec, -1
          K2_L1_DONE:
          s_waitcnt lgkmcnt(0)""")
    CA=[RWE+i for i in range(4)]; CK=[RWE+4+i for i in range(4)]; CM=[RWE+8+i for i in range(4)]; CP=[RWE+12+i for i in range(4)]
    a(f"""v_add_u32 v{vt0}, s{sWB}, v{vL4}""")
    for c in range(4):
        a(f"ds_read_b32 v{CA[c]}, v{vt0} offset:{OFFP_OFF+256*c}")
    for it in range(NIT):
        a(f"ds_read_b32 v{VF+it}, v{vLrd} offset:{64*it}")
    a(f"s_waitcnt lgkmcnt({NIT if NIT<=15 else 15})")
    if not opt.get('tsepi'): ts(9)
    for c in range(4):
        a(f"""v_lshlrev_b32 v{CA[c]}, 2, v{CA[c]}
              buffer_load_dword v{CK[c]}, v{CA[c]}, s[{sTB}:{sTB+3}], 0 offen""")
    a("s_waitcnt lgkmcnt(0)")
    FIRSTCHK=9
    def chk(it,label):
        if it>=FIRSTCHK:
            a(f"""s_cmp_le_u32 s{sNw}, {16*it}
                  s_cbranch_scc1 {label}""")
    def payload(lo,hi,label=None):
        a(f"s_mov_b64 exec, s[{mQ012}:{mQ012+1}]")
        for it in range(lo,hi):
            if label: chk(it,label)
            a(f"""v_mad_u32_u24 v{VF+it}, v{VF+it}, {GREC}, v{vq16}
                  buffer_load_dwordx4 v[{REC+4*it}:{REC+4*it+3}], v{VF+it}, s[{sREC}:{sREC+3}], 0 offen {RECF}""")
        if label: a(f"{label}:")
        a("s_mov_b64 exec, -1")
    G=opt.get('pgrp',3)
    payload(0,G)
    if not opt.get('tsepi'): ts(1)
    for i in range(8*NPW): a(f"v_mov_b32 v{ACC+i}, 0")
    for i in range(R1,R1+16): a(f"v_mov_b32 v{i}, 0")
    a(f"""v_lshrrev_b32 v{vKH}, 5, v{vLane}
          v_lshlrev_b32 v{vKH}, 4, v{vKH}
          v_add_u32 v{vKH}, s{sWB}, v{vKH}
          v_lshrrev_b32 v{vt0}, 4, v{vLane}
          v_and_b32 v{vt1}, 15, v{vLane}
          v_lshlrev_b32 v{vSwz}, 2, v{vt0}
          v_sub_u32 v{vSwz}, v{vt1}, v{vSwz}
          v_and_b32 v{vSwz}, 15, v{vSwz}
          v_lshlrev_b32 v{vSwz}, 4, v{vSwz}
          v_lshl_add_u32 v{vSwz}, v{vt0}, 8, v{vSwz}
          v_bfe_u32 v{vE}, v{vLane}, 2, 2
          v_bfe_u32 v{vS}, v{vLane}, 1, 1
          v_lshl_add_u32 v{vS}, v{vt0}, 1, v{vS}
          v_lshl_add_u32 v{vS}, v{vE}, 2, v{vS}
          v_and_b32 v{vTr1}, 15, v{vS}
          v_add_u32 v{vTr2}, 8, v{vS}
          v_and_b32 v{vTr2}, 15, v{vTr2}
          v_and_b32 v{vS}, 1, v{vLane}
          v_lshlrev_b32 v{vS}, 3, v{vS}
          v_lshl_add_u32 v{vS}, v{vE}, 8, v{vS}
          v_add_u32 v{vS}, s{sRing}, v{vS}
          v_lshl_add_u32 v{vTr1}, v{vTr1}, 4, v{vS}
          v_lshl_add_u32 v{vTr2}, v{vTr2}, 4, v{vS}
          s_mov_b32 s{t3}, 0x80fffc00
          s_waitcnt vmcnt({G})
          s_barrier""")
    if not opt.get('tsepi'): ts(2)
    NPFE=opt.get('pf2e',0)
    if NPFE:
        a(f"""s_lshr_b32 s{t0}, s2, 3
              s_lshl_b32 s{t0}, s{t0}, 3
              s_add_u32 s{t0}, s{t0}, s{sW}
              s_lshl_b32 s{t0}, s{t0}, 13
              v_lshlrev_b32 v{vE}, 7, v{vLane}""")
        for i in range(NPFE):
            a(f"""buffer_load_dword v0, v{vE}, s[{sXT}:{sXT+3}], s{t0} offen
                  s_add_u32 s{t0}, s{t0}, {256*8192}""")
    a(f"""s_cmp_lg_u32 s{sMode}, 2
          s_cbranch_scc1 K2_NOFLAG
          v_mov_b32 v{vt0}, 48
          v_mov_b32 v{vt1}, 0xffff
          ds_write_b32 v{vt0}, v{vt1}
          K2_NOFLAG:""")
    for c in range(4):
        a(f"""v_cmpx_gt_i32 vcc, 0, v{CK[c]}
              v_and_b32 v{CM[c]}, 0xfc, v{CK[c]}
              ds_add_u32 v{CM[c]}, v{vOne} offset:{NODECNT}
              s_mov_b64 exec, -1""")
    payload(G,2*G)
    a(f"""s_waitcnt lgkmcnt(0)
          s_barrier""")
    ts(10)
    a(f"""s_cmp_eq_u32 s{sW}, 0
          s_cbranch_scc1 K2_MAP""")
    payload(2*G,NIT,"K2_LD_DONE")
    a(f"""s_branch K2_MAP_DONE
          K2_MAP:
          v_cmpx_gt_u32 vcc, {NPB}, v{vLane}
          ds_read_b32 v{vE}, v{vL4} offset:{NODECNT}
          s_add_u32 s{t2}, s{sWB}, {BINS_OFF}
          s_waitcnt lgkmcnt(0)
          v_min_u32 v{vE}, 63, v{vE}
          v_lshl_add_u32 v{vE}, v{vE}, 2, s{t2}
          ds_add_rtn_u32 v{vS}, v{vE}, v{vOne}
          s_mov_b64 exec, -1
          v_add_u32 v{vt0}, s{t2}, v{vL4}
          ds_read_b32 v{vO}, v{vt0}
          s_waitcnt lgkmcnt(0)
          v_mov_b32 v{vOn}, v{vO}""")
    scan_incl(a,vOn)
    a(f"""v_sub_u32 v{vOn}, v{vOn}, v{vO}
          ds_write_b32 v{vt0}, v{vOn}
          v_cmpx_gt_u32 vcc, {NPB}, v{vLane}
          ds_read_b32 v{vO}, v{vE}
          s_waitcnt lgkmcnt(0)
          v_add_u32 v{vO}, v{vO}, v{vS}
          v_lshrrev_b32 v{vS}, 3, v{vO}
          v_and_b32 v{vE}, 7, v{vO}
          v_and_b32 v{vt1}, 1, v{vS}
          v_mul_u32_u24 v{vt1}, 7, v{vt1}
          v_xor_b32 v{vE}, v{vE}, v{vt1}
          v_lshlrev_b32 v{vO}, 5, v{vS}
          v_lshl_or_b32 v{vO}, v{vE}, 2, v{vO}
          ds_write_b32 v{vL4}, v{vO} offset:{MAPL}
          v_mul_u32_u24 v{vE}, 5, v{vE}
          v_add_u32 v{vE}, v{vE}, v{vS}
          v_lshlrev_b32 v{vE}, 2, v{vE}
          v_lshlrev_b32 v{vO}, 10, v{vLane}
          ds_write_b32 v{vE}, v{vO} offset:{INVL}
          s_mov_b64 exec, -1
          v_mov_b32 v{vO}, 0
          ds_write_b32 v{vt0}, v{vO}
          s_waitcnt lgkmcnt(0)
          K2_MAP_DONE:
          s_barrier
          s_cmp_lg_u32 s{sW}, 0
          s_cbranch_scc1 K2_PL0_DONE""")
    payload(2*G,NIT,"K2_LD_DONE0")
    a("K2_PL0_DONE:")
    ts(11)
    a(f"v_and_b32 v{vt0}, 0xfc, v{CK[0]}") if False else None
    for c in range(4):
        a(f"""v_and_b32 v{CM[c]}, 0xfc, v{CK[c]}
              ds_read_b32 v{CM[c]}, v{CM[c]} offset:{MAPL}""")
    a(f"""s_add_u32 s{t2}, s{sWB}, {CAPW*RECB}
          v_mov_b32 v{vE}, s{t2}
          v_add_u32 v{vS}, s{sRing}, v{vL4}
          s_movk_i32 s{t4}, {HDR}
          s_mov_b32 s{t5}, {HDR+RING_OFF}
          s_waitcnt lgkmcnt(0)""")
    for c in range(4):
        a(f"""v_and_or_b32 v{CK[c]}, v{CK[c]}, s{t3}, v{CM[c]}
              v_and_b32 v{CM[c]}, 0x1c, v{CM[c]}
              v_cmpx_gt_i32 vcc, 0, v{CK[c]}
              ds_add_rtn_u32 v{CP[c]}, v{CM[c]}, v{vOne}
              s_mov_b64 exec, -1""")
    for c in range(4):
        a(f"v_mul_u32_u24 v{CM[c]}, {WSZ//4}, v{CM[c]}")
    a("s_waitcnt lgkmcnt(0)")
    for c in range(4):
        a(f"""v_cmp_gt_i32 vcc, 0, v{CK[c]}
              v_min_u32 v{CP[c]}, s{sCAP}, v{CP[c]}
              v_lshl_add_u32 v{vt1}, v{CP[c]}, 2, v{CM[c]}
              v_mad_u32_u24 v{vt0}, v{CP[c]}, {RECB}, v{CM[c]}
              v_add_u32 v{vt1}, s{t5}, v{vt1}
              v_add_u32 v{vt0}, s{t4}, v{vt0}
              v_cndmask_b32 v{vt0}, v{vE}, v{vt0}, vcc
              ds_write_b32 v{vS}, v{vt0} offset:{1024+256*c}
              s_mov_b64 exec, vcc
              ds_write_b32 v{vt1}, v{CK[c]}
              s_mov_b64 exec, -1""")
    a(f"""s_waitcnt lgkmcnt(0)
          s_barrier""")
    ts(3)
    a(f"""K2_AFTER:
          v_and_b32 v{vt0}, 63, v{vL4}
          ds_read_b32 v{vt1}, v{vt0}
          v_add_u32 v{vt0}, s{sWB}, v{vL4}
          v_add_u32 v{vE}, s{sRing}, v{vL4}""")
    NS=4
    KEY=[RWE+i for i in range(4)]; BA=[RWE+4+i for i in range(4)]; RK=[RWE+8+i for i in range(4)]; ST=[RWE+12+i for i in range(4)]; VAL=[RWO+i for i in range(4)]
    SM=VM
    for i in range(NS):
        a(f"ds_read_b32 v{KEY[i]}, v{vE} offset:{256*i}")
    a(f"v_mov_b32 v{vS}, 0xfffc00")
    for i in range(4):
        a(f"ds_write_b32 v{vt0}, v{vS} offset:{OFFP_OFF+256*i}")
    a(f"""v_cmpx_gt_u32 vcc, 32, v{vLane}
          ds_write_b32 v{vt0}, v{vS} offset:{OFFP_OFF+1024}
          s_mov_b64 exec, -1
          s_add_u32 s{t2}, s{sWB}, {BINS_OFF}
          s_waitcnt lgkmcnt(5)
          v_readlane_b32 s{sN}, v{vt1}, s{sW}
          s_cmp_eq_u32 s{sMode}, 1
          s_cbranch_scc1 K2_SORT
          v_cmp_lt_u32 vcc, s{sCAP}, v{vt1}
          s_cbranch_vccnz K2_SLOW_INIT
          K2_SORT:""")
    for i in range(NS):
        a(f"""s_sub_i32 s{t0}, s{sN}, {64*i}
              s_max_i32 s{t0}, s{t0}, 0
              v_cmp_gt_u32 s[{SM+2*i}:{SM+2*i+1}], s{t0}, v{vLane}
              v_bfe_u32 v{BA[i]}, v{KEY[i]}, {BSH}, {24-BSH}
              v_lshl_add_u32 v{BA[i]}, v{BA[i]}, 2, s{t2}""")
    for i in range(NS):
        a(f"""s_mov_b64 exec, s[{SM+2*i}:{SM+2*i+1}]
              ds_add_rtn_u32 v{RK[i]}, v{BA[i]}, v{vOne}""")
    a(f"""s_mov_b64 exec, -1
          ds_read_b32 v{vS}, v{vt0} offset:{BINS_OFF}
          s_mov_b32 s{t3}, 0xfffc38""")
    for i in range(NS):
        a(f"""v_and_b32 v{VAL[i]}, 0xfffc00, v{KEY[i]}
              v_lshrrev_b32 v{vt1}, 2, v{KEY[i]}
              v_and_or_b32 v{VAL[i]}, v{vt1}, 56, v{VAL[i]}
              v_add_u32 v{vt1}, {64*i}, v{vLane}
              v_lshl_or_b32 v{VAL[i]}, v{vt1}, 24, v{VAL[i]}""")
    a(f"""s_waitcnt lgkmcnt(0)
          v_mov_b32 v{vO}, v{vS}""")
    scan_incl(a,vO)
    a(f"""v_sub_u32 v{vO}, v{vO}, v{vS}
          ds_write_b32 v{vt0}, v{vO} offset:{BINS_OFF}""")
    for i in range(NS):
        a(f"ds_read_b32 v{ST[i]}, v{BA[i]}")
    a(f"""s_add_u32 s{t2}, s{sWB}, {OFFP_OFF}
          v_and_b32 v{vt0}, 31, v{vLane}
          v_lshlrev_b32 v{vOad}, 2, v{vt0}
          v_add_u32 v{vOad}, s{t2}, v{vOad}
          v_lshrrev_b32 v{vt1}, 3, v{vt0}
          v_lshlrev_b32 v{vt1}, 2, v{vt1}
          v_and_or_b32 v{vt1}, v{vt0}, 3, v{vt1}
          v_lshlrev_b32 v{vEad}, 2, v{vt1}
          v_add_u32 v{vEad}, s{t2}, v{vEad}
          v_lshrrev_b32 v{vt0}, 2, v{vLane}
          v_lshlrev_b32 v{vSad}, 2, v{vt0}
          v_add_u32 v{vSad}, s{t2}, v{vSad}
          s_waitcnt lgkmcnt(0)""")
    for i in range(NS):
        a(f"""v_add_u32 v{ST[i]}, v{ST[i]}, v{RK[i]}
              v_lshl_add_u32 v{ST[i]}, v{ST[i]}, 2, s{t2}
              s_mov_b64 exec, s[{SM+2*i}:{SM+2*i+1}]
              ds_write_b32 v{ST[i]}, v{VAL[i]}
              s_mov_b64 exec, -1""")
    BAD=[196+i for i in range(5)]; OAD=[201+i for i in range(5)]
    def epi_addr():
        e_,s_,o_,on_,u0,u1=T,T+1,T+2,T+3,T+4,T+5
        a(f"""v_and_b32 v{u1}, 15, v{vLane}
              v_lshrrev_b32 v{e_}, 4, v{vLane}
              s_lshr_b32 s{t0}, s{sW}, 2
              s_mul_i32 s{t0}, s{t0}, 80
              v_add_u32 v{s_}, s{t0}, v{u1}
              s_movk_i32 s{t5}, 272
              v_lshlrev_b32 v{o_}, 4, v{e_}
              v_add_u32 v{on_}, {HDR}, v{o_}""")
        for i in range(5):
            a(f"""v_add_u32 v{u0}, {16*i}, v{s_}
                  v_and_b32 v{u1}, 0xfc, v{u0}
                  ds_read_b32 v{OAD[i]}, v{u1} offset:{INVL}
                  v_mul_u32_u24 v{u1}, 3277, v{u0}
                  v_lshrrev_b32 v{u1}, 16, v{u1}
                  v_mul_u32_u24 v{u1}, {WSZ-20*272}, v{u1}
                  v_mad_u32_u24 v{BAD[i]}, v{u0}, s{t5}, v{u1}
                  v_add_u32 v{BAD[i]}, v{BAD[i]}, v{on_}""")
        a(f"""v_and_b32 v{u0}, 3, v{vLane}
              v_lshl_add_u32 v{o_}, v{u0}, 8, v{o_}
              s_waitcnt lgkmcnt(0)""")
        for i in range(5):
            a(f"v_add_u32 v{OAD[i]}, v{OAD[i]}, v{o_}")
    ts(4)
    a(f"""s_cmp_eq_u32 s{sMode}, 1
          s_cbranch_scc1 K2_MAIN_SETUP
          v_lshrrev_b32 v{vt0}, 2, v{vLane}
          v_lshlrev_b32 v{vt0}, 2, v{vt0}
          v_add_u32 v{vt0}, s{sRing}, v{vt0}""")
    for it in range(NIT):
        a(f"ds_read_b32 v{VF+it}, v{vt0} offset:{1024+64*it}")
    if NPF2:
        a(f"""s_lshr_b32 s{t0}, s2, 3
              s_lshl_b32 s{t0}, s{t0}, 3
              s_add_u32 s{t0}, s{t0}, s{sW}
              s_lshl_b32 s{t0}, s{t0}, 13
              v_lshlrev_b32 v{vE}, 7, v{vLane}""")
        for i in range(NPF2):
            a(f"""buffer_load_dword v0, v{vE}, s[{sXT}:{sXT+3}], s{t0} offen
                  s_add_u32 s{t0}, s{t0}, {256*8192}""")
    a(f"""s_mov_b64 exec, s[{mQ012}:{mQ012+1}]
          s_waitcnt vmcnt({NPF2}) lgkmcnt(0)""")
    ts(14)
    for it in range(NIT):
        chk(it,"K2_P2_DONE")
        r=REC+4*it
        a(f"""v_add_u32 v{VF+it}, v{VF+it}, v{vq16}
              ds_write_b128 v{VF+it}, v[{r}:{r+3}]""")
    a(f"""K2_P2_DONE:
          s_mov_b64 exec, -1
          s_and_b32 s{t0}, s{sW}, 3
          s_lshl_b32 s{t0}, s{t0}, 13
          s_add_u32 s{t1}, s{t0}, 4096
          s_waitcnt lgkmcnt(0)""")
    for i in range(4):
        a(f"buffer_load_dwordx4 v[{WOFR+4*i}:{WOFR+4*i+3}], v{vL16}, s[{sFRG}:{sFRG+3}], s{t0} offen offset:{1024*i}")
    for i in range(4):
        a(f"buffer_load_dwordx4 v[{WOFR+16+4*i}:{WOFR+16+4*i+3}], v{vL16}, s[{sFRG}:{sFRG+3}], s{t1} offen offset:{1024*i}")
    a("""s_barrier
         K2_MAIN_SETUP:""")
    ts(15)
    ts(12,True)
    if TS:
        a(f"""v_mov_b32 v{vt0}, s{sN}
              s_lshl_b32 s34, s{sB}, 4
              s_add_u32 s34, s34, s{sW}
              s_lshl_b32 s34, s34, 6
              s_add_u32 s34, s34, {DIAG_OFF+0x40000+4*10}
              v_mov_b32 v{vt1}, s34
              s_mov_b64 exec, 1
              global_store_dword v{vt1}, v{vt0}, s[10:11]
              s_mov_b64 exec, -1""")
    a(f"""s_cmp_eq_u32 s{sN}, 0
          s_cbranch_scc1 K2_EMPTY
          ds_read_b32 v{vO}, v{vOad}
          ds_read_b32 v{vE}, v{vEad}
          ds_read_b32 v{vS}, v{vSad}
          s_mov_b32 s{sRem}, s{sN}
          s_mov_b32 s{t3}, 0xfffc00
          s_waitcnt lgkmcnt(0)""")
    def operand_reads():
        a(f"""v_lshrrev_b32 v{vt0}, 24, v{vE}
              v_lshrrev_b32 v{vt1}, 24, v{vS}
              v_mad_u32_u24 v{vt0}, v{vt0}, {RECB}, v{vKH}
              v_mad_u32_u24 v{vt1}, v{vt1}, {RECB}, s{sSH}
              s_mov_b64 exec, s[{mH0}:{mH0+1}]
              ds_read_b128 v[{R1}:{R1+3}], v{vt0}
              s_mov_b64 exec, s[{mH1}:{mH1+1}]
              ds_read_b128 v[{R2}:{R2+3}], v{vt0}
              s_mov_b64 exec, s[{mW0}:{mW0+1}]
              ds_read_b64 v[{S[0]}:{S[0]+1}], v{vt1}
              s_mov_b64 exec, s[{mW1}:{mW1+1}]
              ds_read_b64 v[{S[1]}:{S[1]+1}], v{vt1}
              s_mov_b64 exec, s[{mQ2}:{mQ2+1}]
              ds_read_b64 v[{S[2]}:{S[2]+1}], v{vt1}
              s_mov_b64 exec, s[{mW3}:{mW3+1}]
              ds_read_b64 v[{S[3]}:{S[3]+1}], v{vt1}
              s_mov_b64 exec, -1""")
    def kr(e): return KR+(e%NKR)
    def readk(e,lane,vsrc):
        a(f"v_readlane_b32 s{kr(e)}, v{vsrc}, {lane}")
    def issue(e):
        a(f"""s_add_u32 m0, s{sRing}, {(e%RING)*1024}
              s_and_b32 s{t4}, s{kr(e)}, s{t3}
              buffer_load_dwordx4 v{vSwz}, s[{sXT}:{sXT+3}], s{t4} offen lds {XF}""")
    def trrd(e):
        xp=XP+4*(e%2)
        a(f"""ds_read_b64_tr_b16 v[{xp}:{xp+1}], v{vTr1} offset:{(e%RING)*1024}
              ds_read_b64_tr_b16 v[{xp+2}:{xp+3}], v{vTr2} offset:{(e%RING)*1024}""")
    def tpm(e):
        tb=T+8*(e%2); xp=XP+4*(e%2)
        a(f"""v_mfma_f32_4x4x4_16b_bf16 v[{tb}:{tb+3}], v[{A}:{A+1}], v[{xp}:{xp+1}], 0 cbsz:4 abid:{e}
              v_mfma_f32_4x4x4_16b_bf16 v[{tb+4}:{tb+7}], v[{A}:{A+1}], v[{xp+2}:{xp+3}], 0 cbsz:4 abid:{e}""")
    for e in range(U+1): readk(e,e,vO)
    a("s_nop 3")
    for e in range(U): issue(e)
    operand_reads()
    epi_addr()
    a(f"s_waitcnt vmcnt({U-1})")
    trrd(0)
    a(f"s_waitcnt vmcnt({U-2})")
    trrd(1)
    def batch(tail,thr=0):
        a(f"""s_waitcnt lgkmcnt(0)
              v_mfma_f32_4x4x4_16b_bf16 v[{T}:{T+3}], v[{P[0]}:{P[0]+1}], v[{S[0]}:{S[0]+1}], 0
              v_mfma_f32_32x32x16_bf16 v[{RWE}:{RWE+15}], v[{R1}:{R1+3}], v[{B1e}:{B1e+3}], 0
              v_add_u32 v{vOad}, 64, v{vOad}
              v_mfma_f32_4x4x4_16b_bf16 v[{T}:{T+3}], v[{P[1]}:{P[1]+1}], v[{S[1]}:{S[1]+1}], v[{T}:{T+3}]
              v_mfma_f32_32x32x16_bf16 v[{RWO}:{RWO+15}], v[{R1}:{R1+3}], v[{B1o}:{B1o+3}], 0
              v_add_u32 v{vEad}, 64, v{vEad}
              v_mfma_f32_4x4x4_16b_bf16 v[{T}:{T+3}], v[{P[2]}:{P[2]+1}], v[{S[2]}:{S[2]+1}], v[{T}:{T+3}]
              v_mfma_f32_32x32x16_bf16 v[{RWE}:{RWE+15}], v[{R2}:{R2+3}], v[{B2e}:{B2e+3}], v[{RWE}:{RWE+15}]
              v_add_u32 v{vSad}, 64, v{vSad}
              v_mfma_f32_4x4x4_16b_bf16 v[{T}:{T+3}], v[{P[3]}:{P[3]+1}], v[{S[3]}:{S[3]+1}], v[{T}:{T+3}]
              v_mfma_f32_32x32x16_bf16 v[{RWO}:{RWO+15}], v[{R2}:{R2+3}], v[{B2o}:{B2o+3}], v[{RWO}:{RWO+15}]
              ds_read_b32 v{vOn}, v{vOad}
              ds_read_b32 v{vE}, v{vEad}
              ds_read_b32 v{vS}, v{vSad}
              s_nop 1
              v_cvt_pk_bf16_f32 v{A}, v{T}, v{T+1}
              v_cvt_pk_bf16_f32 v{A+1}, v{T+2}, v{T+3}
              s_nop 1""")
        tpm(0)
        for e in range(16):
            readk(e+U+1, e+U+1, vO)
            issue(e+U)
            a(f"s_waitcnt vmcnt({U-2-thr})")
            trrd(e+2)
            a(f"s_and_b32 s{t5}, s{kr(e)}, 0x38")
            if e<15:
                a("s_waitcnt lgkmcnt(2)")
                tpm(e+1)
            tb=T+8*(e%2)
            a(f"s_set_gpr_idx_on s{t5}, gpr_idx(DST)" if not USEPK else f"s_set_gpr_idx_on s{t5}, gpr_idx(SRC2,DST)")
            if USEPK:
                pe=RWE+(e&~1); po=RWO+(e&~1); sel=e&1
                for (base,rw,tt) in ((0,pe,tb),(2,pe,tb+2),(4,po,tb+4),(6,po,tb+6)):
                    a(f"v_pk_fma_f32 v[{ACC+base}:{ACC+base+1}], v[{tt}:{tt+1}], v[{rw}:{rw+1}], v[{ACC+base}:{ACC+base+1}] op_sel:[0,{sel},0] op_sel_hi:[1,{sel},1]")
            else:
                for w in range(4): a(f"v_fmac_f32 v{ACC+w}, v{tb+w}, v{RWE+e}")
                for w in range(4): a(f"v_fmac_f32 v{ACC+4+w}, v{tb+4+w}, v{RWO+e}")
            a("s_set_gpr_idx_off")
            if tail:
                a(f"""s_cmp_eq_u32 s{sRem}, {e+1}
                      s_cbranch_scc1 K2_MAIN_DONE""")
            if e==4:
                a("s_waitcnt lgkmcnt(0)")
                operand_reads()
        a(f"v_mov_b32 v{vO}, v{vOn}")
    THR=opt.get('thr',0)
    if THR:
        NREF=opt.get('nref',178); KM=opt.get('thk',5); KS=opt.get('ths',3)
        a(f"""s_sub_i32 s36, {NREF}, s{sN}
              s_max_i32 s36, s36, 0
              s_mul_i32 s36, s36, {KM}
              s_lshr_b32 s36, s36, {KS}
              s_min_u32 s36, s36, 16
              s_mov_b32 s37, 8""")
    if opt.get('tsb'):
        a("s_mov_b32 s39, 0")
    a(f"""K2_LOOP:""")
    if opt.get('tsb'):
        a(f"""s_memrealtime s[32:33]
              s_waitcnt lgkmcnt(0)
              v_mov_b32 v{vt0}, s32
              s_lshl_b32 s34, s{sB}, 4
              s_add_u32 s34, s34, s{sW}
              s_lshl_b32 s34, s34, 6
              s_add_u32 s34, s34, {DIAG_OFF+0x80000}
              s_add_u32 s34, s34, s39
              s_add_u32 s39, s39, 4
              v_mov_b32 v{vt1}, s34
              s_mov_b64 exec, 1
              global_store_dword v{vt1}, v{vt0}, s[10:11]
              s_mov_b64 exec, -1""")
    a(f"""s_cmp_lt_u32 s{sRem}, 17
          s_cbranch_scc1 K2_TAIL""")
    if THR:
        a(f"""s_add_u32 s37, s37, s36
              s_cmp_ge_u32 s37, 16
              s_cbranch_scc1 K2_SLOWB""")
    batch(False)
    a(f"""s_sub_u32 s{sRem}, s{sRem}, 16
          s_branch K2_LOOP""")
    if THR:
        a("K2_SLOWB:")
        a("s_sub_u32 s37, s37, 16")
        batch(False,THR)
        a(f"""s_sub_u32 s{sRem}, s{sRem}, 16
              s_branch K2_LOOP""")
    a("K2_TAIL:")
    batch(True)
    a(f"""K2_MAIN_DONE:
          s_mov_b64 exec, -1
          s_waitcnt vmcnt(0) lgkmcnt(0)""")
    ts(5)
    ts(13,True)
    a(f"""s_cmp_eq_u32 s{sMode}, 1
          s_cbranch_scc1 K2_SLOW_NEXT""")
    a(f"""K2_EPI:
          v_add_u32 v{vt0}, s{sWB}, v{vL4}""")
    for k in range(NPW):
        for w in range(4):
            n=4*k+w
            a(f"""v_cvt_pk_bf16_f32 v{RWE+n}, v{ACC+8*k+w}, v{ACC+8*k+4+w}
                  ds_write_b32 v{vt0}, v{RWE+n} offset:{n*272}""")
    a(f"""s_mul_i32 s{t0}, s{sB}, {NPB*1024}
          s_and_b32 s{t1}, s{sW}, 3
          s_lshl_b32 s{t1}, s{t1}, 6
          s_add_u32 s{t0}, s{t0}, s{t1}
          s_waitcnt vmcnt(0) lgkmcnt(0)""")
    if opt.get('tsepi'): ts(9)
    a("s_barrier")
    if opt.get('tsepi'): ts(1)
    BO=[RWE,RWE+16]
    DO=[ACC,ACC+8]
    OUTR=[ACC+16,ACC+20]
    def rdb(i):
        for kb in range(4):
            a(f"ds_read_b128 v[{BO[i%2]+4*kb}:{BO[i%2]+4*kb+3}], v{BAD[i]} offset:{kb*64}")
    def fin(i):
        d=DO[i%2]; o=OUTR[i%2]
        for p in range(4): a(f"v_cvt_pk_bf16_f32 v{o+p}, v{d+2*p}, v{d+2*p+1}")
        a(f"buffer_store_dwordx4 v[{o}:{o+3}], v{OAD[i]}, s[{sOUT}:{sOUT+3}], s{t0} offen {OUTF}")
    rdb(0)
    for i in range(5):
        if i<4:
            rdb(i+1); a("s_waitcnt lgkmcnt(4)")
        else:
            a("s_waitcnt lgkmcnt(0)")
        d=DO[i%2]
        for tt in range(2):
            for kb in range(4):
                c="0" if kb==0 else f"v[{d+4*tt}:{d+4*tt+3}]"
                a(f"v_mfma_f32_16x16x32_bf16 v[{d+4*tt}:{d+4*tt+3}], v[{WOFR+16*tt+4*kb}:{WOFR+16*tt+4*kb+3}], v[{BO[i%2]+4*kb}:{BO[i%2]+4*kb+3}], {c}")
        if i>=1: fin(i-1)
    a("s_nop 7")
    fin(4)
    if opt.get('tsepi'): ts(2)
    if TS or DBG2:
        a("s_waitcnt vmcnt(0)"); ts(6)
    a("s_endpgm")
    a("K2_EMPTY:")
    epi_addr()
    a("s_branch K2_MAIN_DONE")
    a(f"""K2_PF:
          v_lshlrev_b32 v{vt0}, 7, v{vLane}
          s_sub_u32 s{t0}, s{sB}, {NB}
          s_lshl_b32 s{t0}, s{t0}, 3
          s_add_u32 s{t0}, s{t0}, s{sW}
          s_lshl_b32 s{t0}, s{t0}, 13
          s_waitcnt lgkmcnt(0)""")
    srd(a,sXT,4,5,N*1024)
    if PF:
        a(f"""s_movk_i32 s{t1}, 27
              K2_PFL:
              buffer_load_dword v{vO}, v{vt0}, s[{sXT}:{sXT+3}], s{t0} offen
              s_add_u32 s{t0}, s{t0}, {6*8*8192}
              s_sub_u32 s{t1}, s{t1}, 1
              s_cmp_lg_u32 s{t1}, 0
              s_cbranch_scc1 K2_PFL""")
    a("s_endpgm")
    SR=T+4
    a(f"""K2_SLOW_INIT:
          s_mov_b32 s{sMode}, 1
          s_mov_b32 s{sWb}, 0
          s_and_b32 s{t0}, s{sW}, 3
          s_lshl_b32 s{t0}, s{t0}, 13
          s_add_u32 s{t1}, s{t0}, 4096
          s_waitcnt vmcnt(0)""")
    for i in range(4):
        a(f"buffer_load_dwordx4 v[{WOFR+4*i}:{WOFR+4*i+3}], v{vL16}, s[{sFRG}:{sFRG+3}], s{t0} offen offset:{1024*i}")
    for i in range(4):
        a(f"buffer_load_dwordx4 v[{WOFR+16+4*i}:{WOFR+16+4*i+3}], v{vL16}, s[{sFRG}:{sFRG+3}], s{t1} offen offset:{1024*i}")
    a(f"v_mov_b32 v{vt1}, v{vShare}")
    scan_incl(a,vt1)
    a(f"""s_nop 0
          v_readlane_b32 s{sNw}, v{vt1}, 63
          s_waitcnt lgkmcnt(0)
          s_barrier
          v_mov_b32 v{vt0}, 52
          v_mov_b32 v{vt1}, s{sNw}
          ds_max_u32 v{vt0}, v{vt1}
          s_waitcnt lgkmcnt(0)
          s_barrier
          ds_read_b32 v{vt1}, v{vt0}
          s_waitcnt lgkmcnt(0)
          v_readfirstlane_b32 s{sRounds}, v{vt1}
          s_branch K2_SLOW_ROUND
          K2_SLOW_NEXT:
          s_add_u32 s{sWb}, s{sWb}, 16
          s_cmp_ge_u32 s{sWb}, s{sRounds}
          s_cbranch_scc1 K2_EPI
          K2_SLOW_ROUND:
          s_barrier
          v_mov_b32 v{vt1}, 0
          s_cmp_lg_u32 s{sW}, 0
          s_cbranch_scc1 K2_SLOW_NOCNT
          v_cmpx_gt_u32 vcc, 12, v{vLane}
          ds_write_b32 v{vL4}, v{vt1}
          s_mov_b64 exec, -1
          K2_SLOW_NOCNT:
          v_add_u32 v{vt0}, s{sWB}, v{vL4}
          v_mov_b32 v{vE}, 0xffffff
          ds_write_b32 v{vt0}, v{vt1} offset:{BINS_OFF}
          ds_write_b32 v{vt0}, v{vE} offset:{OFFP_OFF}
          v_subrev_u32 v{vE}, s{sWb}, v{vPre}
          v_mov_b32 v{vO}, v{vA0}
          s_mov_b32 s{t0}, 0
          s_waitcnt lgkmcnt(0)
          s_barrier
          K2_SL1:
          v_cmp_lt_u32 vcc, s{t0}, v{vShare}
          s_cbranch_vccz K2_SL1_DONE
          v_cmp_gt_u32 s[{VM}:{VM+1}], 16, v{vE}
          v_lshlrev_b32 v{vt0}, 2, v{vE}
          v_add_u32 v{vt0}, s{sWB}, v{vt0}
          s_and_b64 exec, vcc, s[{VM}:{VM+1}]
          ds_write_b32 v{vt0}, v{vO} offset:{OFFP_OFF}
          s_mov_b64 exec, -1
          v_add_u32 v{vE}, 1, v{vE}
          v_add_u32 v{vO}, 2, v{vO}
          s_add_u32 s{t0}, s{t0}, 1
          s_branch K2_SL1
          K2_SL1_DONE:
          s_waitcnt lgkmcnt(0)
          ds_read_b32 v{T}, v{vLrd}
          s_waitcnt lgkmcnt(0)
          v_lshlrev_b32 v{T+1}, 2, v{T}
          v_mad_u32_u24 v{T}, v{T}, {GREC}, v{vq16}
          s_mov_b64 exec, s[{mQ012}:{mQ012+1}]
          buffer_load_dwordx4 v[{SR}:{SR+3}], v{T}, s[{sREC}:{sREC+3}], 0 offen
          s_mov_b64 exec, s[{mQ2}:{mQ2+1}]
          s_mov_b32 s{t3}, 0x80fffc00
          s_waitcnt vmcnt(0)
          buffer_load_dword v{SR+2}, v{T+1}, s[{sTB}:{sTB+3}], 0 offen
          s_waitcnt vmcnt(0)
          v_and_b32 v{vt0}, 0xfc, v{SR+2}
          ds_read_b32 v{vt1}, v{vt0} offset:{MAPL}
          v_cmp_gt_i32 s[{VM}:{VM+1}], 0, v{SR+2}
          s_add_u32 s{t2}, s{sWB}, {CAPW*RECB-HDR}
          v_mov_b32 v{vE}, s{t2}
          s_waitcnt lgkmcnt(0)
          v_and_or_b32 v{SR+2}, v{SR+2}, s{t3}, v{vt1}
          v_and_b32 v{vt0}, 0x1c, v{vt1}
          s_and_b64 exec, exec, s[{VM}:{VM+1}]
          ds_add_rtn_u32 v{SR+3}, v{vt0}, v{vOne}
          s_waitcnt lgkmcnt(0)
          v_mul_u32_u24 v{vt0}, {WSZ//4}, v{vt0}
          v_lshl_add_u32 v{vt1}, v{SR+3}, 2, v{vt0}
          v_add_u32 v{vt1}, {HDR+RING_OFF}, v{vt1}
          ds_write_b32 v{vt1}, v{SR+2}
          v_mad_u32_u24 v{vt1}, v{SR+3}, {RECB}, v{vt0}
          s_mov_b64 exec, s[{mQ2}:{mQ2+1}]
          v_cndmask_b32 v{SR+3}, v{vE}, v{vt1}, s[{VM}:{VM+1}]
          s_mov_b64 exec, s[{mQ012}:{mQ012+1}]
          s_nop 1
          v_add_u32_dpp v{T}, v{SR+3}, v{vQ16B} quad_perm:[2,2,2,2] row_mask:0xf bank_mask:0xf
          ds_write_b128 v{T}, v[{SR}:{SR+3}]
          s_mov_b64 exec, -1
          s_waitcnt lgkmcnt(0)
          s_barrier
          s_branch K2_AFTER
          K2_END:
          s_endpgm
          K2_CODE_END:""")

def desc(name,vgpr,sgpr):
    return f""".amdhsa_kernel {name}
  .amdhsa_next_free_vgpr {vgpr}
  .amdhsa_next_free_sgpr {sgpr}
  .amdhsa_accum_offset {vgpr}
  .amdhsa_group_segment_fixed_size 0
  .amdhsa_kernarg_size 88
  .amdhsa_user_sgpr_count 2
  .amdhsa_user_sgpr_kernarg_segment_ptr 1
  .amdhsa_system_sgpr_workgroup_id_x 1
  .amdhsa_float_denorm_mode_32 3
.end_amdhsa_kernel"""

HEADER=open('standalone__tensor_product_equiv_mace__graph.s.ref').read().split('; Override launch')[0]

def generate(opt):
    a=Asm()
    a.raw(HEADER.rstrip('\n'))
    l1=f"; @launch kernel=mace_prep_kernel grid=({NB},1,1) block=({opt.get('k1th',640)},1,1) lds={K1_LDS}"
    l2=f"; @launch kernel={KN} grid=({NWG2},1,1) block=(512,1,1) lds={K2_LDS}"
    xl=str(opt.get('xl','12'))
    for ch in xl:
        a.raw(l1 if ch=='1' else l2)
    a.raw('.amdgcn_target "amdgcn-amd-amdhsa--gfx950"')
    a.raw(".text")
    a.raw(".globl mace_prep_kernel")
    a.raw(f".globl {KN}")
    gen_k1(a,opt)
    gen_k2(a,opt)
    a.raw('.section .rodata,"a"')
    a.raw(".p2align 6")
    a.raw(desc("mace_prep_kernel",((opt['_k1_vgpr']+3)//4)*4,72))
    a.raw(".p2align 6")
    a.raw(desc(KN,256,102))
    return a.text()

if __name__=="__main__":
    opt={}
    out="standalone__tensor_product_equiv_mace__graph.s"
    for arg in sys.argv[1:]:
        if arg.startswith("-o"): out=arg[2:]
        else:
            k,v=arg.split("=")
            try: v=json.loads(v)
            except Exception: pass
            opt[k]=v
    open(out,"w").write(generate(opt))
    print("wrote",out)
```
